```python
import torch

def _softmax(x, axis=-1):
    return torch.softmax(x, dim=axis)
def _gelu(x):
    return torch.nn.functional.gelu(x, approximate="tanh")
def _silu(x):
    return torch.nn.functional.silu(x)
def _sigmoid(x):
    return torch.sigmoid(x)
def _layernorm(x, axis=-1, eps=1e-5):
    m = x.mean(dim=axis, keepdim=True)
    v = x.var(dim=axis, keepdim=True, unbiased=False)
    return (x - m) / torch.sqrt(v + eps)
def _scatter_add(tgt, idx, src, axis=0):
    return tgt.clone().index_add_(axis, idx, src)
def _segment_sum(src, seg, n):
    out = torch.zeros((n,) + src.shape[1:], dtype=src.dtype)
    return out.index_add_(0, seg, src)
def _pad(x, pw):
    flat = tuple(v for pair in reversed(pw) for v in pair)
    return torch.nn.functional.pad(x, flat)

kernel_name = 'interleave_layers__sliding_local_dilated__ssm_conv_h3__prompt'

def setup_inputs():

    _w = (lambda a: (lambda t: t.to(torch.bfloat16) if t.is_floating_point() else t)(torch.as_tensor(a)))
    def _A_setup():
        B, S, D = 1, 2048, 576
        return {
            "x": _w((lambda *s: torch.randn(*s, dtype=torch.bfloat16) * 0.05)(B, S, D)),
            "wqkv": _w((lambda *s: torch.randn(*s, dtype=torch.bfloat16) * 0.05)(D, 3 * D)),
            "wo": _w((lambda *s: torch.randn(*s, dtype=torch.bfloat16) * 0.05)(D, D)),
        }
    _A_in = _A_setup()

    def _B_setup():
        B, S, D = 1, 2048, 576
        ks = 4
        return {
            "q": _w((lambda *s: torch.randn(*s, dtype=torch.bfloat16) * 0.05)(B, S, D)),
            "k": _w((lambda *s: torch.randn(*s, dtype=torch.bfloat16) * 0.4)(B, S, D)),
            "v": _w((lambda *s: torch.randn(*s, dtype=torch.bfloat16) * 0.4)(B, S, D)),
            "shift_k": _w((lambda *s: torch.randn(*s, dtype=torch.bfloat16) * 0.4)(D, ks) * 0.5),
            "ssm_k": _w((lambda *s: torch.randn(*s, dtype=torch.bfloat16) * 0.8)(D, S) * (1.0 / S ** 0.5)),
            "ssm_D": _w((lambda *s: torch.randn(*s, dtype=torch.bfloat16) * 0.4)(D)),
        }
    _B_in = _B_setup()

    return {
        "A_x": _A_in["x"],
        "A_wqkv": _A_in["wqkv"],
        "A_wo": _A_in["wo"],
        "B_q": _B_in["q"],
        "B_k": _B_in["k"],
        "B_v": _B_in["v"],
        "B_shift_k": _B_in["shift_k"],
        "B_ssm_k": _B_in["ssm_k"],
        "B_ssm_D": _B_in["ssm_D"],
    }

def reference(A_x, A_wqkv, A_wo, B_q, B_k, B_v, B_shift_k, B_ssm_k, B_ssm_D):
    def _A_ref(x, wqkv, wo):
        B, S, D = x.shape
        H = 32; Dh = D // H
        W, dil = 8, 2
        qkv = (lambda x, *d: x.permute(*d))((x @ wqkv).reshape(B, S, 3, H, Dh), 2, 0, 3, 1, 4)
        q, k, v = qkv[0], qkv[1], qkv[2]
        scale = Dh ** -0.5
        pos = torch.arange(S)
        off = torch.arange(W) * dil
        idx = pos[:, None] - off[None, :]
        mask = idx >= 0
        idx_c = torch.where(mask, idx, 0).reshape(-1)
        kg = k[:, :, idx_c, :].reshape(B, H, S, W, Dh)
        vg = v[:, :, idx_c, :].reshape(B, H, S, W, Dh)
        logits = torch.einsum("bhsd,bhswd->bhsw", q, kg) * scale
        logits = torch.where(mask[None, None, :, :], logits, -1e9)
        attn = _softmax(logits, axis=-1)
        o = torch.einsum("bhsw,bhswd->bhsd", attn, vg)
        return (lambda x, *d: x.permute(*d))(o, 0, 2, 1, 3).reshape(B, S, D) @ wo

    def _B_ref(q, k, v, shift_k, ssm_k, ssm_D):
        B, S, D = q.shape
        ks = shift_k.shape[-1]
        k_pad = _pad(k, ((0, 0), (ks - 1, 0), (0, 0)))
        k_shift = torch.zeros_like(k)
        for t in range(ks):
            k_shift = k_shift + k_pad[:, t:t + S, :] * shift_k[:, ks - 1 - t][None, None, :]
        kv = k_shift * v
        L = 2 * S
        kv_pad = _pad(kv, ((0, 0), (0, S), (0, 0)))
        kf_pad = _pad(ssm_k, ((0, 0), (0, S)))
        kv_f = (lambda x, axes=(-2,-1): torch.fft.rfft2(x.float(), dim=axes))(kv_pad[:, None, :, :], axes=(1, 2))
        kf_f = (lambda x, axes=(-2,-1): torch.fft.rfft2(x.float(), dim=axes))(kf_pad[:, None, :], axes=(1, 2))
        kf_f = (lambda x, *d: x.permute(*d))(kf_f, 1, 2, 0)
        y_f = kv_f * kf_f[None, :, :, :]
        y = (lambda x, s, axes=(-2,-1): torch.fft.irfft2(x, s=s, dim=axes).to(torch.bfloat16))(y_f, (1, L), axes=(1, 2))[:, 0, :S, :]
        y = y + kv * ssm_D[None, None, :]
        return q * y

    x = A_x
    x = x + _A_ref(_layernorm(x, axis=-1), A_wqkv, A_wo)
    x = x + _B_ref(_layernorm(x, axis=-1), B_k, B_v, B_shift_k, B_ssm_k, B_ssm_D)
    x = x + _A_ref(_layernorm(x, axis=-1), A_wqkv, A_wo)
    x = x + _B_ref(_layernorm(x, axis=-1), B_k, B_v, B_shift_k, B_ssm_k, B_ssm_D)
    return x
```

```python
import re

TRANS = ('v_exp_f32', 'v_log_f32', 'v_rcp_f32', 'v_rsq_f32', 'v_sqrt_f32', 'v_sin_f32', 'v_cos_f32',
         'v_rcp_iflag_f32')

_reg_re = re.compile(r'^(-|abs\(|\|)?([vas])(\d+)\)?\|?$')
_rng_re = re.compile(r'^(-)?([vas])\[(\d+):(\d+)\]$')


def regs_of(tok):
    tok = tok.strip()
    m = _rng_re.match(tok)
    if m:
        k, a, b = m.group(2), int(m.group(3)), int(m.group(4))
        return {(k, i) for i in range(a, b + 1)}
    m = _reg_re.match(tok)
    if m:
        return {(m.group(2), int(m.group(3)))}
    if tok == 'vcc':
        return {('s', 106), ('s', 107)}
    if tok == 'vcc_lo':
        return {('s', 106)}
    if tok == 'vcc_hi':
        return {('s', 107)}
    if tok == 'exec':
        return {('s', 126), ('s', 127)}
    if tok == 'm0':
        return {('s', 124)}
    return set()


def split_ops(s):
    out, depth, cur = [], 0, ''
    for ch in s:
        if ch in '[(':
            depth += 1
        if ch in '])':
            depth -= 1
        if ch == ',' and depth == 0:
            out.append(cur.strip())
            cur = ''
        else:
            cur += ch
    if cur.strip():
        out.append(cur.strip())
    return out


class Ins:
    __slots__ = ('text', 'mn', 'kind', 'defs', 'uses', 'states', 'mf_d', 'mf_ab', 'mf_c', 'passes', 'dpp',
                 'stdata', 'wide_store', 'lanesel', 'ldsdma')

    def __init__(self, text):
        self.text = text
        body = text.split(';')[0].strip()
        parts = body.split(None, 1)
        mn = parts[0]
        self.mn = mn
        rest = parts[1] if len(parts) > 1 else ''
        ops = split_ops(rest)
        mods = ''
        if ops:
            last = ops[-1].split()
            if len(last) > 1:
                mods = ' '.join(last[1:])
                ops[-1] = last[0]
        self.defs, self.uses = set(), set()
        self.states = 1
        self.mf_d = self.mf_ab = self.mf_c = None
        self.passes = 0
        self.dpp = ('quad_perm' in mods or 'row_' in mods or 'wave_' in mods or mn.endswith('_dpp'))
        self.stdata = set()
        self.wide_store = False
        self.lanesel = set()
        self.ldsdma = False
        R = [regs_of(o) for o in ops]
        if mn == 's_nop':
            self.kind = 'nop'
            self.states = int(ops[0], 0) + 1
        elif mn.startswith('v_mfma'):
            self.kind = 'mfma'
            self.mf_d, self.mf_ab, self.mf_c = R[0], R[1] | R[2], R[3]
            self.defs = set(R[0])
            self.uses = R[1] | R[2] | R[3]
            self.passes = 8 if '32x32' in mn else 4
        elif mn.startswith('v_'):
            self.kind = 'valu'
            if mn.startswith('v_permlane') and 'swap' in mn:
                self.defs = R[0] | R[1]
                self.uses = R[0] | R[1]
            elif mn.startswith('v_cmp'):
                self.defs = set(R[0])
                for r in R[1:]:
                    self.uses |= r
            elif '_co_' in mn or mn.startswith('v_addc') or mn.startswith('v_subb'):
                self.defs = R[0] | R[1]
                for r in R[2:]:
                    self.uses |= r
            else:
                self.defs = set(R[0])
                for r in R[1:]:
                    self.uses |= r
                if mn.startswith('v_fmac') or mn.startswith('v_pk_fmac') or mn.startswith('v_dot2c') or \
                        mn.startswith('v_writelane') or self.dpp or 'op_sel' in mods and 'cvt' in mn:
                    self.uses |= R[0]
                if mn.startswith('v_cndmask') and len(ops) == 3:
                    self.uses |= regs_of('vcc')
                if mn.startswith('v_readlane') or mn.startswith('v_writelane'):
                    self.lanesel = set(R[2])
        elif mn.startswith('ds_'):
            self.kind = 'ds'
            if mn.startswith('ds_read') or 'permute' in mn or 'swizzle' in mn:
                self.defs = set(R[0])
                for r in R[1:]:
                    self.uses |= r
                if 'd16' in mn:
                    self.uses |= R[0]
            else:
                for r in R:
                    self.uses |= r
        elif mn.startswith('buffer_') or mn.startswith('global_'):
            self.kind = 'vmem'
            if 'lds' in mods.split() or '_lds_' in mn:
                self.ldsdma = True
                for r in R:
                    self.uses |= r
            elif '_load' in mn:
                self.defs = set(R[0])
                for r in R[1:]:
                    self.uses |= r
            elif mn.startswith('buffer_store') or mn.startswith('buffer_atomic'):
                for r in R:
                    self.uses |= r
                self.stdata = set(R[0])
                self.wide_store = len(R[0]) >= 3
                if mn.startswith('buffer_atomic') and 'sc0' in mods:
                    self.defs = set(R[0])
            elif mn.startswith('global_store'):
                for r in R:
                    self.uses |= r
                self.stdata = set(R[1])
                self.wide_store = len(R[1]) >= 3
            else:
                for r in R:
                    self.uses |= r
        elif mn.startswith('s_'):
            self.kind = 'salu'
            if mn.startswith('s_cmp') or mn.startswith('s_cbranch') or mn in ('s_branch', 's_waitcnt', 's_barrier',
                                                                           's_endpgm', 's_sleep', 's_setprio'):
                for r in R:
                    self.uses |= r
            else:
                if R:
                    self.defs = set(R[0])
                for r in R[1:]:
                    self.uses |= r
                if 'saveexec' in mn:
                    self.defs |= regs_of('exec')
        else:
            raise ValueError('unknown instr ' + text)


def isv(regs):
    return {r for r in regs if r[0] in 'va'}


def iss(regs):
    return {r for r in regs if r[0] == 's'}


def need(prod, cons):
    n = 0
    if prod.kind == 'valu':
        wv = isv(prod.defs)
        ws = iss(prod.defs)
        if cons.kind == 'mfma' and wv & cons.uses:
            n = max(n, 2)
        if cons.kind == 'valu':
            if wv & cons.uses:
                if cons.dpp or cons.mn.startswith('v_permlane'):
                    n = max(n, 2)
                if cons.mn.startswith('v_readlane') or cons.mn.startswith('v_readfirstlane'):
                    n = max(n, 1)
                if prod.mn.replace('_e32', '').replace('_e64', '') in TRANS:
                    n = max(n, 1)
            if ws & cons.uses:
                n = max(n, 2)
            if ws & cons.lanesel:
                n = max(n, 4)
        if cons.kind == 'vmem' and ws & cons.uses:
            n = max(n, 5)
        if cons.kind == 'salu' and ws & cons.uses:
            n = max(n, 1)
    if prod.kind == 'mfma':
        big = {4: 8, 8: 12}[prod.passes]
        if cons.kind == 'mfma':
            if prod.mf_d & cons.mf_ab:
                n = max(n, big)
            if prod.mf_d & cons.mf_c and prod.mf_d != cons.mf_c:
                n = max(n, {4: 6, 8: 10}[prod.passes])
            if prod.mf_d & cons.mf_d and prod.mf_d != cons.mf_c:
                n = max(n, big)
        elif cons.kind in ('valu', 'vmem', 'ds'):
            if prod.mf_d & (cons.uses | cons.defs):
                n = max(n, big)
            if cons.kind == 'valu' and prod.mf_c & cons.defs:
                n = max(n, {4: 3, 8: 7}[prod.passes])
    if prod.kind == 'vmem' and prod.wide_store and prod.stdata & cons.defs:
        n = max(n, 2 if cons.kind == 'valu' else 1)
    if prod.kind == 'salu' and ('s', 124) in prod.defs and cons.ldsdma:
        n = max(n, 1)
    return n


class Asm:
    def __init__(self):
        self.lines = []
        self.window = []
        self.nins = 0

    def raw(self, text):
        self.lines.append(text)

    def comment(self, text):
        self.lines.append('    ; ' + text)

    def label(self, name):
        self.lines.append(name + ':')

    def __call__(self, text):
        for t in text.strip().split('\n'):
            t = t.strip()
            if not t or t.startswith(';'):
                continue
            self.emit(t)

    def emit(self, text):
        ins = Ins(text)
        dist = 0
        req = 0
        for p in reversed(self.window):
            nd = need(p, ins)
            if nd > dist:
                req = max(req, nd - dist)
            dist += p.states
            if dist > 20:
                break
        while req > 0:
            k = min(req, 16)
            nop = Ins('s_nop %d' % (k - 1))
            self.window.append(nop)
            self.lines.append('    ' + nop.text)
            self.nins += 1
            req -= k
        self.window.append(ins)
        if len(self.window) > 24:
            self.window.pop(0)
        self.lines.append('    ' + text)
        self.nins += 1

    def pad(self, n=12):
        while n > 0:
            k = min(n, 16)
            self.emit('s_nop %d' % (k - 1))
            n -= k

    def text(self):
        return '\n'.join(self.lines) + '\n'


def v(i, n=1):
    return 'v%d' % i if n == 1 else 'v[%d:%d]' % (i, i + n - 1)


def a(i, n=1):
    return 'a%d' % i if n == 1 else 'a[%d:%d]' % (i, i + n - 1)


def s(i, n=1):
    return 's%d' % i if n == 1 else 's[%d:%d]' % (i, i + n - 1)
```

```python
import sys
from asmlib import Asm, v, a, s

NAME = 'interleave_layers__sliding_local_dilated__ssm_conv_h3__prompt'
SZ = 2048 * 576 * 2
WS_XN1 = 0
WS_XN2 = 0x240000
WS_O1 = 0x480000
WS_O2 = 0x6C0000
WS_A1 = 0x900000
WS_A2 = 0xB40000
WS_XR = 0xD80000
WS_UR = 0xFC0000
WS_YT = 0x1200000
WS_WOF = 0x1440000
WOF_SZ = 36 * 18 * 1024

P_X, P_WQKV, P_WO, P_BQ, P_BK, P_BV, P_SK, P_SSMK, P_SSMD, P_OUT, P_DBG, P_WS = [16 + 2 * i for i in range(12)]


def magic(div, nmax, maxbits=24):
    for sh in range(1, 32):
        m = -(-(1 << sh) // div)
        if m >= (1 << maxbits) or (nmax - 1) * m >= (1 << 32):
            continue
        if all(((x * m) >> sh) == x // div for x in range(nmax)):
            return m, sh
    raise ValueError


def prologue(A, nwg):
    A('s_cmp_ge_u32 s2, %d' % nwg)
    A('s_cbranch_scc1 %s' % A.endlabel)
    A('s_load_dwordx16 s[16:31], s[0:1], 0')
    A('s_load_dwordx8 s[32:39], s[0:1], 64')
    A('s_waitcnt lgkmcnt(0)')


def srd(A, d, p, off, size):
    if off:
        A('s_add_u32 s%d, s%d, 0x%x' % (d, p, off))
        A('s_addc_u32 s%d, s%d, 0' % (d + 1, p + 1))
    else:
        A('s_mov_b32 s%d, s%d' % (d, p))
        A('s_mov_b32 s%d, s%d' % (d + 1, p + 1))
    A('s_mov_b32 s%d, 0x%x' % (d + 2, size))
    A('s_mov_b32 s%d, 0x00020000' % (d + 3))


def begin_kernel(A, name):
    A.raw('.text')
    A.raw('.globl %s' % name)
    A.raw('.p2align 8')
    A.raw('.type %s,@function' % name)
    A.raw('%s:' % name)
    A.endlabel = 'L_end_' + name
    A.window = []


def end_kernel(A, name, nv, na=0, ns=102):
    A.label(A.endlabel)
    A('s_endpgm')
    acc = (nv + 3) // 4 * 4
    A.raw('.section .rodata,"a"')
    A.raw('.p2align 6')
    A.raw('.amdhsa_kernel %s' % name)
    A.raw('  .amdhsa_next_free_vgpr %d' % (acc + na if na else nv))
    A.raw('  .amdhsa_next_free_sgpr %d' % ns)
    A.raw('  .amdhsa_accum_offset %d' % acc)
    A.raw('  .amdhsa_group_segment_fixed_size 0')
    A.raw('  .amdhsa_kernarg_size 96')
    A.raw('  .amdhsa_user_sgpr_count 2')
    A.raw('  .amdhsa_user_sgpr_kernarg_segment_ptr 1')
    A.raw('  .amdhsa_system_sgpr_workgroup_id_x 1')
    A.raw('.end_amdhsa_kernel')


def unpack(A, dlo, src):
    A('v_and_b32 v%d, 0xffff0000, v%d' % (dlo + 1, src))
    A('v_lshlrev_b32 v%d, 16, v%d' % (dlo, src))


def rnd_pair(A, d, t):
    A('v_cvt_pk_bf16_f32 v%d, v%d, v%d' % (t, d, d + 1))
    unpack(A, d, t)


def allreduce32(A, regs, tmps):
    for mod in ('quad_perm:[1,0,3,2]', 'quad_perm:[2,3,0,1]', 'row_half_mirror', 'row_mirror'):
        for r in regs:
            A('v_add_f32_dpp v%d, v%d, v%d %s row_mask:0xf bank_mask:0xf' % (r, r, r, mod))
    for r, t in zip(regs, tmps):
        A('v_mov_b32 v%d, v%d' % (t, r))
    for r, t in zip(regs, tmps):
        A('v_permlane16_swap_b32 v%d, v%d' % (r, t))
    for r, t in zip(regs, tmps):
        A('v_add_f32 v%d, v%d, v%d' % (r, r, t))


def ln_stats(A, X, S, T):
    A('v_pk_mul_f32 v[%d:%d], v[%d:%d], v[%d:%d]' % (T + 2, T + 3, X, X + 1, X, X + 1))
    A('v_pk_add_f32 v[%d:%d], v[%d:%d], v[%d:%d]' % (T, T + 1, X, X + 1, X + 2, X + 3))
    A('v_pk_fma_f32 v[%d:%d], v[%d:%d], v[%d:%d], v[%d:%d]' % (T + 2, T + 3, X + 2, X + 3, X + 2, X + 3, T + 2, T + 3))
    for j in range(2, 9):
        x = X + 2 * j
        A('v_pk_add_f32 v[%d:%d], v[%d:%d], v[%d:%d]' % (T, T + 1, T, T + 1, x, x + 1))
        A('v_pk_fma_f32 v[%d:%d], v[%d:%d], v[%d:%d], v[%d:%d]' % (T + 2, T + 3, x, x + 1, x, x + 1, T + 2, T + 3))
    A('v_add_f32 v%d, v%d, v%d' % (T, T, T + 1))
    A('v_add_f32 v%d, v%d, v%d' % (T + 2, T + 2, T + 3))
    allreduce32(A, [T, T + 2], [T + 1, T + 3])
    inv = 1.0 / 576.0
    import struct
    invb = struct.unpack('<I', struct.pack('<f', inv))[0]
    epsb = struct.unpack('<I', struct.pack('<f', 1e-5))[0]
    A('v_mul_f32 v%d, 0x%x, v%d' % (T, invb, T))
    A('v_mul_f32 v%d, 0x%x, v%d' % (T + 2, invb, T + 2))
    A('v_fma_f32 v%d, -v%d, v%d, v%d' % (T + 2, T, T, T + 2))
    A('v_max_f32 v%d, 0, v%d' % (T + 2, T + 2))
    A('v_cvt_pk_bf16_f32 v%d, v%d, v%d' % (T + 4, T, T + 2))
    A('v_and_b32 v%d, 0xffff0000, v%d' % (T + 2, T + 4))
    A('v_lshlrev_b32 v%d, 16, v%d' % (T, T + 4))
    A('v_add_f32 v%d, 0x%x, v%d' % (T + 2, epsb, T + 2))
    A('v_cvt_pk_bf16_f32 v%d, v%d, v%d' % (T + 4, T + 2, T + 2))
    A('v_lshlrev_b32 v%d, 16, v%d' % (T + 2, T + 4))
    A('v_sqrt_f32 v%d, v%d' % (T + 2, T + 2))
    A('v_cvt_pk_bf16_f32 v%d, v%d, v%d' % (T + 4, T + 2, T + 2))
    A('v_lshlrev_b32 v%d, 16, v%d' % (T + 2, T + 4))
    A('v_rcp_f32 v%d, v%d' % (S + 2, T + 2))
    A('v_sub_f32 v%d, 0, v%d' % (S, T))
    A('v_sub_f32 v%d, 0, v%d' % (S + 1, T))
    A('v_fma_f32 v%d, -v%d, v%d, 2.0' % (T + 4, T + 2, S + 2))
    A('v_mul_f32 v%d, v%d, v%d' % (S + 2, S + 2, T + 4))
    A('v_mov_b32 v%d, v%d' % (S + 3, S + 2))


def pk(op, d, x, y, z=None):
    if z is None:
        return 'v_pk_%s_f32 v[%d:%d], v[%d:%d], v[%d:%d]' % (op, d, d + 1, x, x + 1, y, y + 1)
    return 'v_pk_%s_f32 v[%d:%d], v[%d:%d], v[%d:%d], v[%d:%d]' % (op, d, d + 1, x, x + 1, y, y + 1, z, z + 1)


def gen_prep(A):
    name = 'prep_kernel'
    begin_kernel(A, name)
    prologue(A, 256)
    srd(A, 40, P_X, 0, SZ)
    srd(A, 44, P_WS, WS_XN1, SZ)
    srd(A, 48, P_BK, 0, SZ)
    srd(A, 52, P_BV, 0, SZ)
    srd(A, 56, P_SK, 0, 576 * 8)
    srd(A, 60, P_WS, WS_UR, SZ)
    srd(A, 64, P_WO, 0, 576 * 576 * 2)
    srd(A, 68, P_WS, WS_WOF, WOF_SZ)
    A('v_lshrrev_b32 v1, 5, v0')
    A('s_lshl_b32 s3, s2, 3')
    A('v_add_u32 v1, s3, v1')
    A('v_mul_u32_u24 v1, 1152, v1')
    A('v_and_b32 v2, 31, v0')
    A('v_lshl_add_u32 v1, v2, 2, v1')
    for j in range(9):
        A('buffer_load_dword v%d, v1, s[40:43], 0 offen offset:%d' % (10 + j, 128 * j))
    A('s_mul_i32 s3, s2, 81')
    A('v_add_u32 v2, s3, v0')
    m, sh = magic(288, 20736 + 256)
    A('v_mul_u32_u24 v3, %d, v2' % m)
    A('v_lshrrev_b32 v3, %d, v3' % sh)
    A('v_mul_u32_u24 v4, 288, v3')
    A('v_sub_u32 v4, v2, v4')
    A('v_lshrrev_b32 v5, 2, v3')
    A('v_and_b32 v6, 3, v3')
    A('v_mul_u32_u24 v7, 36, v5')
    A('v_lshl_add_u32 v7, v6, 3, v7')
    A('v_and_b32 v8, 2, v6')
    A('v_add_u32 v7, v7, v8')
    A('v_mul_u32_u24 v8, 288, v5')
    A('v_mul_u32_u24 v9, 72, v6')
    A('v_add_u32 v8, v8, v9')
    A('v_subrev_u32 v8, 4592, v8')
    A('v_cmp_le_u32 vcc, 16, v5')
    A('v_cndmask_b32 v7, v7, v8, vcc')
    A('v_cndmask_b32 v9, 0, 1, vcc')
    A('v_mul_u32_u24 v7, 1152, v7')
    A('v_lshl_add_u32 v7, v4, 2, v7')
    A('v_cmp_gt_u32 vcc, 81, v0')
    A('v_cndmask_b32 v7, 0x40000000, v7, vcc')
    LJ = [0, 1, 18, 19, 36, 37, 54, 55]
    for j in range(8):
        A('s_mov_b32 s4, %d' % ((LJ[j] - j) * 1152))
        A('v_mad_u32_u24 v8, v9, s4, v7')
        A('s_mov_b32 s5, %d' % (j * 1152))
        A('buffer_load_dword v%d, v8, s[64:67], s5 offen' % (40 + j))
    A('v_lshrrev_b32 v8, 3, v4')
    A('v_mul_u32_u24 v8, 18, v8')
    A('v_add_u32 v8, v8, v5')
    A('v_lshlrev_b32 v8, 6, v8')
    A('v_lshl_add_u32 v8, v6, 4, v8')
    A('v_and_b32 v4, 7, v4')
    A('v_lshl_add_u32 v8, v4, 1, v8')
    A('v_lshlrev_b32 v8, 4, v8')
    A('v_cndmask_b32 v8, 0x40000000, v8, vcc')
    A('s_waitcnt vmcnt(8)')
    X = 60
    for j in range(9):
        unpack(A, X + 2 * j, 10 + j)
    ln_stats(A, X, 80, 84)
    for j in range(9):
        x = X + 2 * j
        A(pk('add', x, x, 80))
        rnd_pair(A, x, 90)
        A(pk('mul', x, x, 82))
        A('v_cvt_pk_bf16_f32 v%d, v%d, v%d' % (10 + j, x, x + 1))
        A('buffer_store_dword v%d, v1, s[44:47], 0 offen offset:%d' % (10 + j, 128 * j))
    A('s_waitcnt vmcnt(9)')
    A('s_mov_b32 s4, 0x05040100')
    A('s_mov_b32 s5, 0x07060302')
    for i in range(4):
        A('v_perm_b32 v%d, v%d, v%d, s4' % (48 + i, 41 + 2 * i, 40 + 2 * i))
        A('v_perm_b32 v%d, v%d, v%d, s5' % (52 + i, 41 + 2 * i, 40 + 2 * i))
    A('buffer_store_dwordx4 v[48:51], v8, s[68:71], 0 offen')
    A('buffer_store_dwordx4 v[52:55], v8, s[68:71], 0 offen offset:16')
    A('s_lshr_b32 s6, s2, 3')
    A('s_and_b32 s7, s2, 7')
    A('s_mov_b32 s8, 0')
    A('v_mov_b32 v2, v0')
    A.pad(4)
    A.label('L_kv_round')
    A('v_and_b32 v3, 7, v2')
    A('v_lshrrev_b32 v4, 3, v2')
    A('s_lshl_b32 s9, s6, 6')
    A('v_lshl_add_u32 v5, v3, 3, s9')
    A('s_mul_i32 s9, s7, 36')
    A('v_add_u32 v4, s9, v4')
    A('v_mul_u32_u24 v6, 1152, v5')
    A('v_lshl_add_u32 v6, v4, 2, v6')
    A('v_cmp_gt_u32 vcc, 288, v2')
    A('v_cndmask_b32 v6, 0x40000000, v6, vcc')
    A('v_add_u32 v7, 4608, v6')
    A('v_subrev_u32 v9, 3456, v6')
    A('v_cmp_eq_u32 s[10:11], 0, v5')
    A('v_mov_b32 v3, 0x40000000')
    A('v_cndmask_b32 v9, v9, v3, s[10:11]')
    K = 10
    V = 21
    for j in range(3):
        A('buffer_load_dword v%d, v9, s[48:51], 0 offen offset:%d' % (K + j, 1152 * j))
    for j in range(4):
        A('buffer_load_dword v%d, v6, s[48:51], 0 offen offset:%d' % (K + 3 + j, 1152 * j))
    for j in range(4):
        A('buffer_load_dword v%d, v7, s[48:51], 0 offen offset:%d' % (K + 7 + j, 1152 * j))
    for j in range(4):
        A('buffer_load_dword v%d, v6, s[52:55], 0 offen offset:%d' % (V + j, 1152 * j))
    for j in range(4):
        A('buffer_load_dword v%d, v7, s[52:55], 0 offen offset:%d' % (V + 4 + j, 1152 * j))
    A('v_lshlrev_b32 v3, 4, v4')
    A('v_cndmask_b32 v3, 0x40000000, v3, vcc')
    A('buffer_load_dwordx4 v[32:35], v3, s[56:59], 0 offen')
    A('v_lshlrev_b32 v8, 13, v4')
    A('v_sub_u32 v5, 2040, v5')
    A('v_lshl_add_u32 v8, v5, 1, v8')
    A('v_cndmask_b32 v8, 0x40000000, v8, vcc')
    A('s_waitcnt vmcnt(0)')
    ST = 36
    for t in range(4):
        lo, hi = 32 + (t >> 1), 34 + (t >> 1)
        if t & 1:
            A('v_and_b32 v%d, 0xffff0000, v%d' % (ST + 2 * t, lo))
            A('v_and_b32 v%d, 0xffff0000, v%d' % (ST + 2 * t + 1, hi))
        else:
            A('v_lshlrev_b32 v%d, 16, v%d' % (ST + 2 * t, lo))
            A('v_lshlrev_b32 v%d, 16, v%d' % (ST + 2 * t + 1, hi))
    KU = 60
    for j in range(11):
        unpack(A, KU + 2 * j, K + j)
    R = 90
    for n in range(8):
        acc, p, t = 100, 102, 104
        A(pk('mul', acc, KU + 2 * n, ST + 6))
        rnd_pair(A, acc, t)
        for tt in range(1, 4):
            A(pk('mul', p, KU + 2 * (n + tt), ST + 2 * (3 - tt)))
            rnd_pair(A, p, t)
            A(pk('add', acc, acc, p))
            rnd_pair(A, acc, t)
        unpack(A, p, V + n)
        A(pk('mul', acc, acc, p))
        A('v_cvt_pk_bf16_f32 v%d, v%d, v%d' % (R + n, acc, acc + 1))
    for i in range(4):
        A('v_perm_b32 v%d, v%d, v%d, s4' % (48 + i, R + 6 - 2 * i, R + 7 - 2 * i))
        A('v_perm_b32 v%d, v%d, v%d, s5' % (52 + i, R + 6 - 2 * i, R + 7 - 2 * i))
    A('buffer_store_dwordx4 v[48:51], v8, s[60:63], 0 offen')
    A('v_add_u32 v8, 4096, v8')
    A('buffer_store_dwordx4 v[52:55], v8, s[60:63], 0 offen')
    A('v_add_u32 v2, 256, v2')
    A('v_readfirstlane_b32 s9, v2')
    A('s_nop 3')
    A('s_cmp_lt_u32 s9, 288')
    A('s_cbranch_scc1 L_kv_round')
    A('s_waitcnt vmcnt(0)')
    end_kernel(A, name, 112)


def gen_conv(A):
    name = 'conv_kernel'
    begin_kernel(A, name)
    prologue(A, 576)
    HOFF, UOFF, RED = 0, 4160, 8768
    srd(A, 40, P_SSMK, 0, SZ)
    srd(A, 44, P_WS, WS_UR, SZ)
    srd(A, 48, P_WS, WS_YT, SZ)
    srd(A, 52, P_SSMD, 0, 1152)
    A('s_lshl_b32 s3, s2, 12')
    A('v_lshlrev_b32 v1, 4, v0')
    A('buffer_load_dwordx4 v[4:7], v1, s[40:43], s3 offen')
    A('buffer_load_dwordx4 v[8:11], v1, s[44:47], s3 offen')
    A('s_lshl_b32 s4, s2, 1')
    A('v_mov_b32 v2, s4')
    A('buffer_load_ushort v3, v2, s[52:55], 0 offen')
    A('v_mov_b32 v12, 0')
    A('v_mov_b32 v13, 0')
    A('v_lshlrev_b32 v2, 3, v0')
    A('v_cmp_gt_u32 vcc, 4, v0')
    A('v_add_u32 v14, %d, v2' % (UOFF + 4096 - 32))
    A('v_cndmask_b32 v14, v14, v2, vcc')
    A('v_cmp_gt_u32 vcc, 64, v0')
    A('s_and_saveexec_b64 s[6:7], vcc')
    A('ds_write_b64 v14, v[12:13]')
    A('s_mov_b64 exec, s[6:7]')
    A('v_and_b32 v14, 63, v0')
    A('v_lshrrev_b32 v15, 6, v0')
    A('v_and_b32 v16, 15, v14')
    A('v_lshrrev_b32 v17, 4, v14')
    A('v_lshlrev_b32 v18, 1, v16')
    A('v_lshl_add_u32 v18, v17, 4, v18')
    A('v_lshl_add_u32 v18, v15, 6, v18')
    A('v_add_u32 v18, %d, v18' % (HOFF + 2))
    A('v_lshlrev_b32 v19, 5, v16')
    A('v_sub_u32 v19, %d, v19' % (UOFF + 480))
    A('v_lshl_add_u32 v19, v17, 4, v19')
    A('v_lshl_add_u32 v19, v15, 6, v19')
    A('s_waitcnt vmcnt(1)')
    A('ds_write_b128 v1, v[4:7] offset:%d' % (HOFF + 32))
    A('ds_write_b128 v1, v[8:11] offset:%d' % UOFF)
    A('s_waitcnt lgkmcnt(0)')
    A('s_barrier')
    F, G, ACC = 32, 96, 160
    for m in range(16):
        A('ds_read_b128 v[%d:%d], v19 offset:%d' % (G + 4 * m, G + 4 * m + 3, 256 * m))
    for m in range(16):
        A('ds_read_b128 v[%d:%d], v18 offset:%d' % (F + 4 * m, F + 4 * m + 3, 256 * m))
    first = [True] * 8
    for m in range(16):
        if m < 15:
            A('s_waitcnt lgkmcnt(%d)' % min(15, 15 - m))
        else:
            A('s_waitcnt lgkmcnt(0)')
        e = m >> 1
        for t in range(e, 8):
            gm = m - 2 * t + 14
            c = '0' if first[t] else v(ACC + 4 * t, 4)
            A('v_mfma_f32_16x16x32_bf16 %s, %s, %s, %s' % (v(ACC + 4 * t, 4), v(F + 4 * m, 4), v(G + 4 * gm, 4), c))
            first[t] = False
    A('v_lshlrev_b32 v20, 4, v14')
    A('v_lshl_add_u32 v21, v15, 13, v20')
    for t in range(8):
        A('ds_write_b128 v21, %s offset:%d' % (v(ACC + 4 * t, 4), RED + 1024 * t))
    A('s_waitcnt lgkmcnt(0)')
    A('s_barrier')
    A('v_lshl_add_u32 v21, v15, 11, v20')
    for tt in range(2):
        for q in range(4):
            A('ds_read_b128 %s, v21 offset:%d' % (v(32 + 16 * tt + 4 * q, 4), RED + 8192 * q + 1024 * tt))
    A('v_lshlrev_b32 v22, 9, v15')
    A('v_lshl_add_u32 v22, v16, 4, v22')
    A('v_lshl_add_u32 v22, v17, 2, v22')
    A('v_sub_u32 v23, %d, v22' % (2044 - 256))
    A('v_lshlrev_b32 v23, 1, v23')
    A('ds_read_b64 v[64:65], v23 offset:%d' % (UOFF + 512))
    A('ds_read_b64 v[66:67], v23 offset:%d' % UOFF)
    A('v_lshlrev_b32 v24, 1, v22')
    A('s_waitcnt vmcnt(0)')
    A('v_lshlrev_b32 v4, 16, v3')
    A('v_mov_b32 v5, v4')
    A('s_waitcnt lgkmcnt(0)')
    for tt in range(2):
        b = 32 + 16 * tt
        for h in range(2):
            A(pk('add', b + 2 * h, b + 2 * h, b + 4 + 2 * h))
            A(pk('add', b + 8 + 2 * h, b + 8 + 2 * h, b + 12 + 2 * h))
            A(pk('add', b + 2 * h, b + 2 * h, b + 8 + 2 * h))
            rnd_pair(A, b + 2 * h, 70)
        u = 64 + 2 * tt
        A('v_and_b32 v72, 0xffff0000, v%d' % (u + 1))
        A('v_lshlrev_b32 v73, 16, v%d' % (u + 1))
        A('v_and_b32 v74, 0xffff0000, v%d' % u)
        A('v_lshlrev_b32 v75, 16, v%d' % u)
        for h in range(2):
            A(pk('mul', 72 + 2 * h, 72 + 2 * h, 4))
            rnd_pair(A, 72 + 2 * h, 70)
            A(pk('add', b + 2 * h, b + 2 * h, 72 + 2 * h))
            A('v_cvt_pk_bf16_f32 v%d, v%d, v%d' % (76 + 2 * tt + h, b + 2 * h, b + 2 * h + 1))
        A('buffer_store_dwordx2 v[%d:%d], v24, s[48:51], s3 offen offset:%d' % (76 + 2 * tt, 77 + 2 * tt, 512 * tt))
    A('s_waitcnt vmcnt(0)')
    end_kernel(A, name, 192)
    return RED + 32768


KSB = 6912
WLDS = 18 * KSB
XCH = WLDS


def gen_qkv(A, name, ws_xn, ws_o):
    begin_kernel(A, name)
    prologue(A, 256)
    srd(A, 40, P_WS, ws_xn, SZ)
    srd(A, 44, P_WQKV, 0, 576 * 1728 * 2)
    srd(A, 76, P_WS, ws_o, 0x200000)
    srd(A, 80, P_WS, ws_o + 0x200000, 0x40000)
    A('s_and_b32 s6, s2, 7')
    A('s_lshr_b32 s7, s2, 3')
    A('s_lshr_b32 s4, s6, 1')
    A('s_lshl_b32 s4, s4, 2')
    A('s_lshr_b32 s8, s7, 3')
    A('s_add_u32 s4, s4, s8')
    A('s_and_b32 s5, s6, 1')
    A('s_lshl_b32 s5, s5, 3')
    A('s_and_b32 s8, s7, 7')
    A('s_add_u32 s5, s5, s8')
    A('v_and_b32 v1, 63, v0')
    A('v_lshrrev_b32 v2, 6, v0')
    A('v_readfirstlane_b32 s6, v2')
    A('v_and_b32 v3, 15, v1')
    A('v_lshrrev_b32 v4, 4, v1')
    m, sh = magic(27, 256)
    A('v_mul_u32_u24 v5, %d, v0' % m)
    A('v_lshrrev_b32 v5, %d, v5' % sh)
    A('v_mul_u32_u24 v6, 27, v5')
    A('v_sub_u32 v6, v0, v6')
    m, sh = magic(9, 27)
    A('v_mul_u32_u24 v7, %d, v6' % m)
    A('v_lshrrev_b32 v7, %d, v7' % sh)
    A('v_mul_u32_u24 v8, 9, v7')
    A('v_sub_u32 v8, v6, v8')
    A('s_mov_b32 s8, %d' % (64 * 3456))
    A('v_mul_lo_u32 v9, s8, v5')
    A('v_mul_u32_u24 v10, 1152, v7')
    A('v_add_u32 v9, v9, v10')
    A('v_lshl_add_u32 v9, v8, 3, v9')
    A('s_mul_i32 s8, s5, 72')
    A('v_add_u32 v9, s8, v9')
    A('v_cmp_gt_u32 vcc, 243, v0')
    A('v_cndmask_b32 v9, 0x40000000, v9, vcc')
    A('s_mov_b64 s[84:85], vcc')
    WL = 128
    for r in range(0, 64, 2):
        A('s_mov_b32 s8, %d' % (r * 3456))
        A('buffer_load_dwordx2 %s, v9, s[44:47], s8 offen' % v(WL + 2 * r, 2))
        A('buffer_load_dwordx2 %s, v9, s[44:47], s8 offen offset:3456' % v(WL + 2 * r + 2, 2))
    A('v_mul_u32_u24 v10, %d, v5' % (2 * KSB))
    for e in range(4):
        A('v_lshl_add_u32 v11, v8, 2, %d' % e)
        A('v_cmp_le_u32 vcc, 18, v11')
        A('v_cndmask_b32 v12, 0, 1, vcc')
        A('v_mul_u32_u24 v13, 18, v12')
        A('v_sub_u32 v11, v11, v13')
        A('v_lshl_add_u32 v13, v7, 1, v12')
        A('v_lshlrev_b32 v13, 10, v13')
        A('v_lshl_add_u32 v13, v11, 4, v13')
        A('v_lshlrev_b32 v14, 2, v12')
        A('v_lshl_add_u32 v14, v7, 1, v14')
        A('v_lshl_add_u32 v15, v12, 1, 8')
        A('v_cmp_eq_u32 vcc, 2, v7')
        A('v_cndmask_b32 v14, v14, v15, vcc')
        A('v_add_u32 v14, v14, v11')
        A('v_lshlrev_b32 v14, 4, v14')
        A('v_add_u32 v14, %d, v14' % (6144 - 256))
        A('v_cmp_le_u32 vcc, 16, v11')
        A('v_cndmask_b32 v13, v13, v14, vcc')
        A('v_mov_b32 v14, 256')
        A('v_cndmask_b32 v14, v14, 64+128, vcc' if False else 'v_mov_b32 v15, 192')
        A('v_cndmask_b32 v14, v14, v15, vcc')
        A('v_add_u32 v%d, v10, v13' % (16 + 4 * e))
        for kq in range(1, 4):
            A('v_add_u32 v%d, v%d, v14' % (16 + 4 * e + kq, 16 + 4 * e + kq - 1))
    A('s_and_b32 s7, s6, 1')
    A('s_lshr_b32 s8, s6, 1')
    A('s_lshl_b32 s9, s4, 7')
    A('s_lshl_b32 s10, s8, 6')
    A('s_add_u32 s10, s10, s9')
    A('s_add_u32 s10, s10, s7')
    A('v_lshl_add_u32 v10, v3, 1, s10')
    A('v_mul_u32_u24 v10, 1152, v10')
    A('v_lshl_add_u32 v10, v4, 4, v10')
    A('v_add_u32 v11, %d, v10' % (32 * 1152))
    A('v_and_b32 v12, 7, v3')
    A('v_lshrrev_b32 v13, 3, v3')
    A('v_lshl_add_u32 v12, v12, 1, v13')
    A('s_sub_u32 s10, s9, 16')
    A('v_add_u32 v12, s10, v12')
    A('v_mul_u32_u24 v12, 1152, v12')
    A('v_lshl_add_u32 v12, v4, 4, v12')
    A('s_cmp_eq_u32 s4, 0')
    A('s_cselect_b32 s10, 1, 0')
    A('v_mov_b32 v13, s10')
    A('v_cmp_eq_u32 vcc, 1, v13')
    A('v_mov_b32 v13, 0x40000000')
    A('v_cndmask_b32 v12, v12, v13, vcc')
    XA, XB, XH = 0, 72, 144
    for ks in range(18):
        A('buffer_load_dwordx4 %s, v10, s[40:43], 0 offen offset:%d' % (a(XA + 4 * ks, 4), 64 * ks))
        A('buffer_load_dwordx4 %s, v11, s[40:43], 0 offen offset:%d' % (a(XB + 4 * ks, 4), 64 * ks))
        A('buffer_load_dwordx4 %s, v12, s[40:43], 0 offen offset:%d' % (a(XH + 4 * ks, 4), 64 * ks))
    A('s_mov_b32 s10, 0x05040100')
    A('s_mov_b32 s11, 0x07060302')
    A('s_waitcnt vmcnt(54)')
    A('s_mov_b64 exec, s[84:85]')
    for i in range(8):
        b = WL + 16 * i
        T = 32
        for d in range(4):
            A('v_perm_b32 v%d, v%d, v%d, s10' % (T + d, b + 4 * d + 2, b + 4 * d))
            A('v_perm_b32 v%d, v%d, v%d, s11' % (T + 4 + d, b + 4 * d + 2, b + 4 * d))
            A('v_perm_b32 v%d, v%d, v%d, s10' % (T + 8 + d, b + 4 * d + 3, b + 4 * d + 1))
            A('v_perm_b32 v%d, v%d, v%d, s11' % (T + 12 + d, b + 4 * d + 3, b + 4 * d + 1))
        for e in range(4):
            A('ds_write_b128 v%d, %s offset:%d' % (16 + 4 * e + (i & 3), v(T + 4 * e, 4), KSB * (i >> 2)))
    A('s_mov_b64 exec, -1')
    A('v_lshlrev_b32 v16, 4, v1')
    A('v_add_u32 v17, %d, v16' % (9 * KSB))
    A('v_subrev_u32 v5, 12, v3')
    A('v_cmp_gt_u32 vcc, 12, v3')
    A('v_cndmask_b32 v5, v5, v3, vcc')
    A('v_mul_u32_u24 v6, 12, v4')
    A('v_add_u32 v5, v5, v6')
    A('v_lshlrev_b32 v5, 4, v5')
    A('v_add_u32 v18, 6144, v5')
    A('v_add_u32 v19, %d, v18' % (9 * KSB))
    A('s_cmp_eq_u32 s6, 1')
    A('s_cselect_b32 s12, 1024, 0')
    A('s_add_u32 s12, s12, 2048')
    A('v_add_u32 v20, s12, v16')
    A('s_cmp_eq_u32 s6, 2')
    A('s_cselect_b64 vcc, -1, 0')
    A('v_cndmask_b32 v20, v20, v18, vcc')
    A('v_add_u32 v21, %d, v20' % (9 * KSB))
    A('s_lshl_b32 s12, s7, 10')
    A('s_add_u32 s12, s12, 4096')
    A('v_add_u32 v22, s12, v16')
    A('v_add_u32 v23, %d, v22' % (9 * KSB))
    A('s_waitcnt lgkmcnt(0)')
    A('s_barrier')
    ACC = 64
    WB = [128, 164]

    def wreads(ks):
        hi = 1 if ks >= 9 else 0
        o = (ks - 9 * hi) * KSB
        b = WB[ks & 1]
        L = []
        for nt in range(6):
            L.append('ds_read_b128 %s, v%d offset:%d' % (v(b + 4 * nt, 4), 16 + hi, o + 1024 * nt))
        L.append('ds_read_b128 %s, v%d offset:%d' % (v(b + 24, 4), 18 + hi, o))
        L.append('ds_read_b128 %s, v%d offset:%d' % (v(b + 28, 4), 20 + hi, o))
        L.append('ds_read_b128 %s, v%d offset:%d' % (v(b + 32, 4), 22 + hi, o))
        return L
    for r in wreads(0):
        A(r)
    for ks in range(18):
        nxt = wreads(ks + 1) if ks < 17 else []
        A('s_waitcnt vmcnt(%d) lgkmcnt(0)' % (51 - 3 * ks))
        b = WB[ks & 1]
        mf = []
        for T, X in ((0, XA), (1, XB)):
            for nt in range(7):
                d = v(ACC + 28 * T + 4 * nt, 4)
                c = '0' if ks == 0 else d
                w, x = v(b + 4 * nt, 4), a(X + 4 * ks, 4)
                if nt in (4, 5):
                    mf.append('v_mfma_f32_16x16x32_bf16 %s, %s, %s, %s' % (d, x, w, c))
                else:
                    mf.append('v_mfma_f32_16x16x32_bf16 %s, %s, %s, %s' % (d, w, x, c))
        d = v(120, 4)
        mf.append('v_mfma_f32_16x16x32_bf16 %s, %s, %s, %s' % (d, v(b + 28, 4), a(XH + 4 * ks, 4), '0' if ks == 0 else d))
        d = v(124, 4)
        mf.append('v_mfma_f32_16x16x32_bf16 %s, %s, %s, %s' % (d, a(XH + 4 * ks, 4), v(b + 32, 4), '0' if ks == 0 else d))
        for i, m_ in enumerate(mf):
            A(m_)
            if i < len(nxt):
                A(nxt[i])
    QF = lambda T, h: 128 + 4 * (2 * T + h)
    KF = lambda U, h: 144 + 4 * (2 * U + h)
    VF = lambda h: 168 + 6 * h
    VL = 180
    LT = lambda T: 188 + 4 * T
    E = 200
    H2P = 204
    DT = 208
    A('v_cmp_gt_u32 s[72:73], 16, v1')
    A('v_subrev_u32 v5, 16, v1')
    A('v_cmp_gt_u32 s[74:75], 16, v5')
    A('v_lshlrev_b32 v5, 2, v4')
    A('s_lshl_b32 s12, s7, 3')
    for r in range(4):
        A('v_add_u32 v6, %d, v5' % r)
        A('v_sub_u32 v7, v3, v6')
        A('v_cmp_ge_u32 s[%d:%d], 7, v7' % (48 + 2 * r, 49 + 2 * r))
        A('v_add_u32 v7, 9, v3')
        A('v_cmp_ge_u32 s[%d:%d], v6, v7' % (56 + 2 * r, 57 + 2 * r))
        A('v_subrev_u32 v6, s12, v6')
        A('v_sub_u32 v7, v6, v3')
        A('v_cmp_ge_u32 vcc, 7, v6')
        A('v_cmp_lt_i32 s[14:15], 0, v7')
        A('s_and_b64 s[14:15], s[14:15], vcc')
        A('s_cmp_eq_u32 s4, 0')
        A('s_cselect_b64 s[14:15], 0, s[14:15]')
        A('s_cmp_eq_u32 s8, 0')
        A('s_cselect_b64 s[%d:%d], s[14:15], s[%d:%d]' % (64 + 2 * r, 65 + 2 * r, 56 + 2 * r, 57 + 2 * r))
    A('v_subrev_u32 v5, 32, v1')
    A('v_and_b32 v6, 1, v5')
    A('v_lshlrev_b32 v6, 4, v6')
    A('v_mov_b32 v7, 0x3f80')
    A('v_lshlrev_b32 v7, v6, v7')
    A('v_lshrrev_b32 v5, 1, v5')
    A('v_cmp_eq_u32 vcc, 0, v5')
    A('v_cndmask_b32 v%d, 0, v7, vcc' % E)
    A('v_cmp_eq_u32 vcc, 1, v5')
    A('v_cndmask_b32 v%d, 0, v7, vcc' % (E + 1))
    A('v_mov_b32 v%d, 0' % (E + 2))
    A('v_mov_b32 v%d, 0' % (E + 3))

    def cvt2(d, src):
        A('v_cvt_pk_bf16_f32 v%d, v%d, v%d' % (d, src, src + 1))
        A('v_cvt_pk_bf16_f32 v%d, v%d, v%d' % (d + 1, src + 2, src + 3))
    for T in range(2):
        cvt2(LT(T), ACC + 28 * T + 24)
        A('v_mov_b32 v%d, 0' % (LT(T) + 2))
        A('v_mov_b32 v%d, 0' % (LT(T) + 3))
    cvt2(LT(2), 120)
    A('v_mov_b32 v%d, 0' % (LT(2) + 2))
    A('v_mov_b32 v%d, 0' % (LT(2) + 3))
    for T in range(3):
        A('v_mfma_f32_16x16x32_bf16 %s, %s, %s, 0' % (v(DT + 4 * T, 4), v(LT(T), 4), v(E, 4)))
    cvt2(H2P, 124)
    for T in range(2):
        base = ACC + 28 * T
        for h in range(2):
            cvt2(QF(T, h), base + 4 * h)
            A('v_cndmask_b32 v%d, 0, v%d, s[%d:%d]' % (QF(T, h) + 2, LT(T), 72 + 2 * h, 73 + 2 * h))
            A('v_mov_b32 v%d, 0' % (QF(T, h) + 3))
            cvt2(KF(1 + T, h), base + 8 + 4 * h)
            A('v_mov_b32 v%d, v%d' % (KF(1 + T, h) + 2, LT(T) + 1))
            A('v_mov_b32 v%d, 0' % (KF(1 + T, h) + 3))
            cvt2(VF(h) + 2 + 2 * T, base + 16 + 4 * h)
    for h in range(2):
        A('v_mov_b32 v%d, 0' % (KF(0, h) + 3))
    cvt2(VL + 2, DT)
    cvt2(VL + 4, DT + 4)
    cvt2(DT + 8, DT + 8)
    RS = 2816
    A('v_lshlrev_b32 v5, 3, v1')
    A('s_mul_i32 s12, s6, %d' % RS)
    A('s_add_u32 s12, s12, %d' % (XCH + RS))
    A('v_add_u32 v6, s12, v5')
    A('ds_write_b64 v6, %s offset:0' % v(KF(2, 0), 2))
    A('ds_write_b64 v6, %s offset:512' % v(KF(2, 1), 2))
    A('ds_write_b64 v6, %s offset:1024' % v(VF(0) + 4, 2))
    A('ds_write_b64 v6, %s offset:1536' % v(VF(1) + 4, 2))
    A('ds_write_b64 v6, %s offset:2048' % v(VL + 4, 2))
    A('v_lshlrev_b32 v7, 2, v1')
    A('v_add_u32 v8, s12, v7')
    A('ds_write_b32 v8, v%d offset:2560' % (LT(1) + 1))
    A('s_cmp_eq_u32 s6, 1')
    A('s_cselect_b32 s12, 512, 0')
    A('s_add_u32 s12, s12, %d' % XCH)
    A('s_cmp_eq_u32 s6, 2')
    A('s_cselect_b32 s12, %d, s12' % (XCH + 5 * RS))
    A('v_add_u32 v6, s12, v5')
    A('ds_write_b64 v6, %s' % v(LT(2), 2))
    A('s_lshl_b32 s12, s7, 9')
    A('s_add_u32 s12, s12, %d' % (XCH + 1024))
    A('v_add_u32 v6, s12, v5')
    A('ds_write_b64 v6, %s' % v(H2P, 2))
    A('s_cmp_eq_u32 s6, 2')
    A('s_cselect_b32 s12, 0, %d' % (5 * RS))
    A('s_add_u32 s12, s12, %d' % XCH)
    A('v_add_u32 v6, s12, v5')
    A('ds_write_b64 v6, %s offset:2048' % v(DT + 8, 2))
    A('v_add_u32 v8, s12, v7')
    A('ds_write_b32 v8, v%d offset:2560' % (LT(2) + 1))
    SP = lambda T, h: 64 + 8 * (2 * T + h)
    for T in range(2):
        for h in range(2):
            A('v_mfma_f32_16x16x32_bf16 %s, %s, %s, 0' % (v(SP(T, h) + 4, 4), v(KF(1 + T, h), 4), v(QF(T, h), 4)))
    for h in range(2):
        A('v_mfma_f32_16x16x32_bf16 %s, %s, %s, 0' % (v(SP(1, h), 4), v(KF(1, h), 4), v(QF(1, h), 4)))
    A('s_add_u32 s12, s7, 1')
    A('s_mul_i32 s12, s12, %d' % RS)
    A('s_cmp_eq_u32 s8, 0')
    A('s_cselect_b32 s12, 0, s12')
    A('s_add_u32 s12, s12, %d' % XCH)
    A('v_add_u32 v6, s12, v5')
    A('v_add_u32 v8, s12, v7')
    A('s_waitcnt lgkmcnt(0)')
    A('s_barrier')
    A('ds_read_b64 %s, v6 offset:0' % v(KF(0, 0), 2))
    A('ds_read_b64 %s, v6 offset:512' % v(KF(0, 1), 2))
    A('ds_read_b32 v%d, v8 offset:2560' % (KF(0, 0) + 2))
    A('ds_read_b32 v%d, v8 offset:2560' % (KF(0, 1) + 2))
    A('ds_read_b64 %s, v6 offset:1024' % v(VF(0), 2))
    A('ds_read_b64 %s, v6 offset:1536' % v(VF(1), 2))
    A('ds_read_b64 %s, v6 offset:2048' % v(VL, 2))
    A('s_waitcnt lgkmcnt(0)')
    for h in range(2):
        A('v_mfma_f32_16x16x32_bf16 %s, %s, %s, 0' % (v(SP(0, h), 4), v(KF(0, h), 4), v(QF(0, h), 4)))
    import struct
    fb = lambda x: '0x%x' % struct.unpack('<I', struct.pack('<f', x))[0]
    SC, L2E, NEG = 96, 98, 100
    A('v_mov_b32 v%d, %s' % (SC, fb(18 ** -0.5)))
    A('v_mov_b32 v%d, %s' % (SC + 1, fb(18 ** -0.5)))
    A('v_mov_b32 v%d, %s' % (L2E, fb(1.4426950408889634)))
    A('v_mov_b32 v%d, %s' % (L2E + 1, fb(1.4426950408889634)))
    A('v_mov_b32 v%d, %s' % (NEG, fb(-1e30)))
    PF = lambda T, h: 208 + 4 * (2 * T + h)
    for T in (1, 0):
        for h in range(2):
            S = SP(T, h)
            t = 102
            for q in range(4):
                rnd_pair(A, S + 2 * q, t + q)
            for q in range(4):
                A(pk('mul', S + 2 * q, S + 2 * q, SC))
            for q in range(4):
                rnd_pair(A, S + 2 * q, t + q)
            pm = 64 if T == 0 else 56
            for r in range(4):
                A('v_cndmask_b32 v%d, v%d, v%d, s[%d:%d]' % (S + r, NEG, S + r, pm + 2 * r, pm + 2 * r + 1))
                A('v_cndmask_b32 v%d, v%d, v%d, s[%d:%d]' % (S + 4 + r, NEG, S + 4 + r, 48 + 2 * r, 49 + 2 * r))
            A('v_max3_f32 v%d, v%d, v%d, v%d' % (t, S, S + 1, S + 2))
            A('v_max3_f32 v%d, v%d, v%d, v%d' % (t + 1, S + 3, S + 4, S + 5))
            A('v_max3_f32 v%d, v%d, v%d, v%d' % (t, t, S + 6, S + 7))
            A('v_max_f32 v%d, v%d, v%d' % (t, t, t + 1))
            A('v_mov_b32 v%d, v%d' % (t + 1, t))
            A('v_permlane16_swap_b32 v%d, v%d' % (t, t + 1))
            A('v_max_f32 v%d, v%d, v%d' % (t, t, t + 1))
            A('v_mov_b32 v%d, v%d' % (t + 1, t))
            A('v_permlane32_swap_b32 v%d, v%d' % (t, t + 1))
            A('v_max_f32 v%d, v%d, v%d' % (t, t, t + 1))
            A('v_mul_f32 v%d, v%d, v%d' % (t, L2E, t))
            A('v_sub_f32 v%d, 0, v%d' % (t, t))
            A('v_mov_b32 v%d, v%d' % (t + 1, t))
            for q in range(4):
                A(pk('fma', S + 2 * q, S + 2 * q, L2E, t))
            for r in range(8):
                A('v_exp_f32 v%d, v%d' % (S + r, S + r))
            A(pk('add', t, S, S + 2))
            A(pk('add', t + 2, S + 4, S + 6))
            A(pk('add', t, t, t + 2))
            A('v_add_f32 v%d, v%d, v%d' % (t, t, t + 1))
            A('v_mov_b32 v%d, v%d' % (t + 1, t))
            A('v_permlane16_swap_b32 v%d, v%d' % (t, t + 1))
            A('v_add_f32 v%d, v%d, v%d' % (t, t, t + 1))
            A('v_mov_b32 v%d, v%d' % (t + 1, t))
            A('v_permlane32_swap_b32 v%d, v%d' % (t, t + 1))
            A('v_add_f32 v%d, v%d, v%d' % (t, t, t + 1))
            A('v_rcp_f32 v%d, v%d' % (t, t))
            A('v_mov_b32 v%d, v%d' % (t + 1, t))
            for q in range(4):
                A(pk('mul', S + 2 * q, S + 2 * q, t))
            for q in range(4):
                A('v_cvt_pk_bf16_f32 v%d, v%d, v%d' % (PF(T, h) + q, S + 2 * q, S + 2 * q + 1))
    OM = lambda T, h: 224 + 4 * (2 * T + h)
    OLr = lambda T, h: 240 + 4 * (2 * T + h)
    for T in range(2):
        for h in range(2):
            A('v_mfma_f32_16x16x32_bf16 %s, %s, %s, 0' % (v(OM(T, h), 4), v(VF(h) + 2 * T, 4), v(PF(T, h), 4)))
            A('v_mfma_f32_16x16x32_bf16 %s, %s, %s, 0' % (v(OLr(T, h), 4), v(VL + 2 * T, 4), v(PF(T, h), 4)))
    A('s_lshl_b32 s12, s8, 6')
    A('s_add_u32 s12, s12, s9')
    A('s_lshl_b32 s13, s7, 4')
    A('s_add_u32 s12, s12, s13')
    A('v_add_u32 v5, s12, v3')
    A('v_and_b32 v6, 1, v4')
    A('v_lshlrev_b32 v6, 1, v6')
    A('v_lshrrev_b32 v7, 1, v4')
    A('v_add_u32 v6, v6, v7')
    A('v_lshlrev_b32 v7, 6, v5')
    A('v_lshl_add_u32 v7, v6, 4, v7')
    A('s_lshl_b32 s13, s5, 17')
    A('v_lshlrev_b32 v8, 3, v5')
    A('s_lshl_b32 s14, s5, 14')
    for T in range(2):
        o = 64 + 8 * T
        cvt2(o, OM(T, 0))
        cvt2(o + 2, OM(T, 1))
        A('v_permlane16_swap_b32 v%d, v%d' % (o, o + 2))
        A('v_permlane16_swap_b32 v%d, v%d' % (o + 1, o + 3))
        A('buffer_store_dwordx4 %s, v7, s[76:79], s13 offen offset:%d' % (v(o, 4), 2048 * T))
        A('v_cvt_pk_bf16_f32 v%d, v%d, v%d' % (o + 4, OLr(T, 0), OLr(T, 0) + 1))
        A('v_cvt_pk_bf16_f32 v%d, v%d, v%d' % (o + 5, OLr(T, 1) + 2, OLr(T, 1) + 3))
    A('s_mov_b64 exec, s[72:73]')
    for T in range(2):
        o = 64 + 8 * T
        A('buffer_store_dwordx2 %s, v8, s[80:83], s14 offen offset:%d' % (v(o + 4, 2), 256 * T))
    A('s_mov_b64 exec, -1')
    A('s_waitcnt vmcnt(0)')
    end_kernel(A, name, 256, na=216)
    return XCH + 6 * 2816


def gen_proj(A, name, ws_o, ws_a):
    begin_kernel(A, name)
    prologue(A, 256)
    srd(A, 40, P_WS, ws_o, 0x200000)
    srd(A, 44, P_WS, ws_o + 0x200000, 0x40000)
    srd(A, 48, P_WS, WS_WOF, WOF_SZ)
    srd(A, 52, P_WS, ws_a, SZ)
    A('s_and_b32 s6, s2, 7')
    A('s_lshr_b32 s7, s2, 3')
    A('s_lshl_b32 s4, s6, 3')
    A('s_lshr_b32 s8, s7, 2')
    A('s_add_u32 s4, s4, s8')
    A('s_and_b32 s5, s7, 3')
    A('v_and_b32 v1, 63, v0')
    A('v_lshrrev_b32 v2, 6, v0')
    A('v_readfirstlane_b32 s6, v2')
    A('v_and_b32 v3, 15, v1')
    A('v_lshrrev_b32 v4, 4, v1')
    A('s_lshl_b32 s8, s4, 5')
    A('v_add_u32 v5, s8, v3')
    A('v_lshlrev_b32 v6, 6, v5')
    A('v_lshl_add_u32 v6, v4, 4, v6')
    A('s_lshl_b32 s9, s6, 19')
    for q in range(4):
        A('s_add_u32 s10, s9, %d' % (q * 131072))
        for mt in range(2):
            A('buffer_load_dwordx4 %s, v6, s[40:43], s10 offen offset:%d' % (v(16 + 8 * q + 4 * mt, 4), 1024 * mt))
    A('s_and_b32 s7, s6, 1')
    A('s_lshr_b32 s11, s6, 1')
    A('s_lshl_b32 s10, s7, 4')
    A('v_add_u32 v7, s10, v5')
    A('v_lshlrev_b32 v7, 3, v7')
    A('v_lshl_add_u32 v7, v4, 15, v7')
    A('s_lshl_b32 s10, s11, 17')
    A('buffer_load_dwordx2 v[48:49], v7, s[44:47], s10 offen')
    A('s_add_u32 s10, s10, 16384')
    A('buffer_load_dwordx2 v[50:51], v7, s[44:47], s10 offen')
    A('v_lshlrev_b32 v8, 4, v1')
    A('s_mul_i32 s12, s5, 9')
    A('s_add_u32 s13, s12, s6')
    A('s_mul_i32 s13, s13, 18432')
    A('s_add_u32 s14, s13, %d' % (4 * 18432))
    A('s_add_u32 s15, s12, 8')
    A('s_mul_i32 s15, s15, 18432')
    for ks in range(18):
        for j in range(3):
            if ks % 4 == 0 and ks:
                A('s_add_u32 s%d, s%d, 4096' % (13 + j, 13 + j))
            A('buffer_load_dwordx4 %s, v8, s[48:51], s%d offen offset:%d' % (a(72 * j + 4 * ks, 4), 13 + j, 1024 * (ks % 4)))
    A('s_lshl_b32 s10, s6, 12')
    A('v_add_u32 v9, s10, v8')
    A('s_waitcnt vmcnt(54)')
    for q in range(4):
        for mt in range(2):
            A('ds_write_b128 v9, %s offset:%d' % (v(16 + 8 * q + 4 * mt, 4), 18432 * mt + 1024 * q))
    A('s_mul_i32 s10, s7, 18432')
    A('s_lshl_b32 s11, s11, 10')
    A('s_add_u32 s10, s10, s11')
    A('v_add_u32 v9, s10, v8')
    A('ds_write_b128 v9, v[48:51] offset:16384')
    A('s_waitcnt lgkmcnt(0)')
    A('s_barrier')
    AF = 64
    for ks in range(18):
        for mt in range(2):
            A('ds_read_b128 %s, v8 offset:%d' % (v(AF + 8 * ks + 4 * mt, 4), 18432 * mt + 1024 * ks))
        if ks == 6:
            pass
    ACC = 16
    for ks in range(18):
        A('s_waitcnt vmcnt(%d) lgkmcnt(%d)' % (51 - 3 * ks, min(15, 34 - 2 * ks)))
        for j in range(3):
            for mt in range(2):
                d = v(ACC + 8 * j + 4 * mt, 4)
                A('v_mfma_f32_16x16x32_bf16 %s, %s, %s, %s' % (d, a(72 * j + 4 * ks, 4), v(AF + 8 * ks + 4 * mt, 4), '0' if ks == 0 else d))
    A('v_lshl_add_u32 v5, v3, 1, s8')
    A('v_mul_u32_u24 v5, 1152, v5')
    A('v_lshl_add_u32 v5, v4, 3, v5')
    A('s_mul_i32 s10, s5, 288')
    A('s_lshl_b32 s11, s6, 5')
    A('s_add_u32 s11, s11, s10')
    A('s_add_u32 s10, s10, 256')
    for j in range(3):
        for mt in range(2):
            d = ACC + 8 * j + 4 * mt
            A('v_cvt_pk_bf16_f32 v%d, v%d, v%d' % (d, d, d + 1))
            A('v_cvt_pk_bf16_f32 v%d, v%d, v%d' % (d + 1, d + 2, d + 3))
            if j < 2:
                A('buffer_store_dwordx2 %s, v5, s[52:55], s11 offen offset:%d' % (v(d, 2), 1152 * mt + 128 * j))
            else:
                A('buffer_store_dwordx2 %s, v5, s[52:55], s10 offen offset:%d' % (v(d, 2), 1152 * mt))
    A('s_waitcnt vmcnt(0)')
    end_kernel(A, name, 208, na=216)
    return 36864


def gen_row(A, name, layer):
    begin_kernel(A, name)
    prologue(A, 256)
    if layer == 1:
        srd(A, 40, P_X, 0, SZ)
        srd(A, 44, P_WS, WS_A1, SZ)
        srd(A, 52, P_WS, WS_XR, SZ)
        srd(A, 56, P_WS, WS_XN2, SZ)
    else:
        srd(A, 40, P_WS, WS_XR, SZ)
        srd(A, 44, P_WS, WS_A2, SZ)
        srd(A, 52, P_OUT, 0, SZ)
    srd(A, 48, P_WS, WS_YT, SZ)
    A('v_lshrrev_b32 v1, 5, v0')
    A('s_lshl_b32 s3, s2, 3')
    A('v_add_u32 v1, s3, v1')
    A('v_mul_u32_u24 v1, 1152, v1')
    A('v_and_b32 v2, 31, v0')
    A('v_lshl_add_u32 v1, v2, 2, v1')
    A('v_lshlrev_b32 v3, 12, v0')
    A('s_lshl_b32 s4, s2, 4')
    A('buffer_load_dwordx4 v[100:103], v3, s[48:51], s4 offen')
    A('s_add_u32 s5, s4, 0x100000')
    A('buffer_load_dwordx4 v[104:107], v3, s[48:51], s5 offen')
    A('s_add_u32 s5, s4, 0x200000')
    A('buffer_load_dwordx4 v[108:111], v3, s[48:51], s5 offen')
    for j in range(9):
        A('buffer_load_dword v%d, v1, s[40:43], 0 offen offset:%d' % (10 + j, 128 * j))
    for j in range(9):
        A('buffer_load_dword v%d, v1, s[44:47], 0 offen offset:%d' % (20 + j, 128 * j))
    A('v_lshlrev_b32 v4, 1, v0')
    A('s_waitcnt vmcnt(18)')
    for r in range(3):
        for q in range(4):
            A('ds_write_b16 v4, v%d offset:%d' % (100 + 4 * r + q, 1536 * (2 * q) + 512 * r))
            A('ds_write_b16_d16_hi v4, v%d offset:%d' % (100 + 4 * r + q, 1536 * (2 * q + 1) + 512 * r))
    A('v_lshrrev_b32 v5, 5, v0')
    A('v_mul_u32_u24 v5, 1536, v5')
    A('v_lshl_add_u32 v5, v2, 2, v5')
    A('s_waitcnt lgkmcnt(0)')
    A('s_barrier')
    for j in range(9):
        A('ds_read_b32 v%d, v5 offset:%d' % (30 + j, 128 * j))
    X, Y, Tm = 40, 60, 80
    A('s_waitcnt vmcnt(0)')
    for j in range(9):
        x = X + 2 * j
        unpack(A, x, 10 + j)
        unpack(A, Tm, 20 + j)
        A(pk('add', x, x, Tm))
        rnd_pair(A, x, Tm + 2)
    ln_stats(A, X, 84, 88)
    A('s_waitcnt lgkmcnt(0)')
    for j in range(9):
        x = X + 2 * j
        A(pk('add', Tm, x, 84))
        rnd_pair(A, Tm, Tm + 2)
        A(pk('mul', Tm, Tm, 86))
        rnd_pair(A, Tm, Tm + 2)
        unpack(A, Y, 30 + j)
        A(pk('mul', Tm, Tm, Y))
        rnd_pair(A, Tm, Tm + 2)
        A(pk('add', x, x, Tm))
        A('v_cvt_pk_bf16_f32 v%d, v%d, v%d' % (10 + j, x, x + 1))
        A('buffer_store_dword v%d, v1, s[52:55], 0 offen offset:%d' % (10 + j, 128 * j))
        if layer == 1:
            unpack(A, x, 10 + j)
    if layer == 1:
        ln_stats(A, X, 84, 88)
        for j in range(9):
            x = X + 2 * j
            A(pk('add', x, x, 84))
            rnd_pair(A, x, Tm + 2)
            A(pk('mul', x, x, 86))
            A('v_cvt_pk_bf16_f32 v%d, v%d, v%d' % (20 + j, x, x + 1))
            A('buffer_store_dword v%d, v1, s[56:59], 0 offen offset:%d' % (20 + j, 128 * j))
    A('s_waitcnt vmcnt(0)')
    end_kernel(A, name, 112)
    return 8 * 1536


def main(out, extra_nops=0):
    A = Asm()
    A.raw('.amdgcn_target "amdgcn-amd-amdhsa--gfx950"')
    gen_prep(A)
    lds_conv = gen_conv(A)
    lds_q = gen_qkv(A, 'qkv1_kernel', WS_XN1, WS_O1)
    gen_qkv(A, 'qkv2_kernel', WS_XN2, WS_O2)
    lds_p = gen_proj(A, 'proj1_kernel', WS_O1, WS_A1)
    gen_proj(A, 'proj2_kernel', WS_O2, WS_A2)
    lds_r = gen_row(A, 'row1_kernel', 1)
    gen_row(A, 'row2_kernel', 2)
    hdr = open('cdna_kernels/%s.s.ref' % NAME).read().split('\n')
    hdr = [l for l in hdr if l.startswith(';') and '@launch' not in l and 'Override' not in l and 'grid=ceil' not in l]
    L = []
    L.append('; @launch kernel=prep_kernel grid=(256,1,1) block=(256,1,1) lds=0')
    L.append('; @launch kernel=conv_kernel grid=(576,1,1) block=(256,1,1) lds=%d' % lds_conv)
    L.append('; @launch kernel=qkv1_kernel grid=(256,1,1) block=(256,1,1) lds=%d' % lds_q)
    L.append('; @launch kernel=proj1_kernel grid=(256,1,1) block=(256,1,1) lds=%d' % lds_p)
    L.append('; @launch kernel=row1_kernel grid=(256,1,1) block=(256,1,1) lds=%d' % lds_r)
    L.append('; @launch kernel=qkv2_kernel grid=(256,1,1) block=(256,1,1) lds=%d' % lds_q)
    L.append('; @launch kernel=proj2_kernel grid=(256,1,1) block=(256,1,1) lds=%d' % lds_p)
    L.append('; @launch kernel=row2_kernel grid=(256,1,1) block=(256,1,1) lds=%d' % lds_r)
    for i in range(extra_nops):
        L.append('; @launch kernel=row2_kernel grid=(256,1,1) block=(256,1,1) lds=%d' % lds_r)
    open(out, 'w').write('\n'.join(hdr + L) + '\n' + A.text())
    print('instructions:', A.nins)


if __name__ == '__main__':
    main(sys.argv[1] if len(sys.argv) > 1 else 'cdna_kernels/%s.s' % NAME,
         int(sys.argv[2]) if len(sys.argv) > 2 else 0)
```

```python
import sys, struct
from asmlib import Asm, v, a, s

NAME = 'interleave_layers__sliding_local_dilated__ssm_conv_h3__prompt'
KNAME = NAME + '_kernel'
SZ = 2048 * 576 * 2
LSTR = 0x800000
XNF = 0x000000
OM_ = 0x240000
OL_ = 0x440000
AB_ = 0x480000
FX_ = 0x6C0000
FO_ = 0x6C2000
FA_ = 0x6C4000
UR_ = 0x1000000
YT_ = 0x1240000
WOF = 0x1480000
FP_ = 0x1540000
FY_ = 0x1541000
STAMP = 0x1600000
WS_SIZE = 0x1800000
OOB = 0x40000000

P_X, P_WQKV, P_WO, P_BQ, P_BK, P_BV, P_SK, P_SSMK, P_SSMD, P_OUT, P_DBG, P_WS = [16 + 2 * i for i in range(12)]

KSB = 6912
WLDS = 18 * KSB
SC = WLDS
LDS_TOTAL = 163840
XTP = 1168
XT = SC + 26112
XRS = 3072
XCH = SC
CH_SZ = 12896
SPIN_LIMIT = 30000

STAMPS = False


def fb(x):
    return '0x%x' % struct.unpack('<I', struct.pack('<f', x))[0]


def magic(div, nmax, maxbits=24):
    for sh in range(1, 32):
        m = -(-(1 << sh) // div)
        if m >= (1 << maxbits) or (nmax - 1) * m >= (1 << 32):
            continue
        if all(((x * m) >> sh) == x // div for x in range(nmax)):
            return m, sh
    raise ValueError


def srd(A, d, p, size):
    A('s_mov_b32 s%d, s%d' % (d, p))
    A('s_mov_b32 s%d, s%d' % (d + 1, p + 1))
    A('s_mov_b32 s%d, 0x%x' % (d + 2, size))
    A('s_mov_b32 s%d, 0x00020000' % (d + 3))


S_HIM = 101
S_PLO = 100
S_PHI = 99
S_LAY = 98
S_SCL = 96
S_L2E = 94
S_CNT = 93
S_G0 = 90
WSR = 's[40:43]'


def unpack(A, dlo, src):
    A('v_and_b32 v%d, s%d, v%d' % (dlo + 1, S_HIM, src))
    A('v_lshlrev_b32 v%d, 16, v%d' % (dlo, src))


def rnd_pair(A, d, t):
    A('v_cvt_pk_bf16_f32 v%d, v%d, v%d' % (t, d, d + 1))
    unpack(A, d, t)


def pk(op, d, x, y, z=None):
    f = lambda r: r if isinstance(r, str) else 'v[%d:%d]' % (r, r + 1)
    if z is None:
        return 'v_pk_%s_f32 %s, %s, %s' % (op, f(d), f(x), f(y))
    return 'v_pk_%s_f32 %s, %s, %s, %s' % (op, f(d), f(x), f(y), f(z))


def allreduce32(A, regs, tmps):
    for mod in ('quad_perm:[1,0,3,2]', 'quad_perm:[2,3,0,1]', 'row_half_mirror', 'row_mirror'):
        for r in regs:
            A('v_add_f32_dpp v%d, v%d, v%d %s row_mask:0xf bank_mask:0xf' % (r, r, r, mod))
    for r, t in zip(regs, tmps):
        A('v_mov_b32 v%d, v%d' % (t, r))
    for r, t in zip(regs, tmps):
        A('v_permlane16_swap_b32 v%d, v%d' % (r, t))
    for r, t in zip(regs, tmps):
        A('v_add_f32 v%d, v%d, v%d' % (r, r, t))


def ln_stats(A, X, S, T):
    A(pk('mul', T + 2, X, X))
    A(pk('add', T, X, X + 2))
    A(pk('fma', T + 2, X + 2, X + 2, T + 2))
    for j in range(2, 9):
        x = X + 2 * j
        A(pk('add', T, T, x))
        A(pk('fma', T + 2, x, x, T + 2))
    A('v_add_f32 v%d, v%d, v%d' % (T, T, T + 1))
    A('v_add_f32 v%d, v%d, v%d' % (T + 2, T + 2, T + 3))
    allreduce32(A, [T, T + 2], [T + 1, T + 3])
    A('v_mul_f32 v%d, %s, v%d' % (T, fb(1.0 / 576.0), T))
    A('v_mul_f32 v%d, %s, v%d' % (T + 2, fb(1.0 / 576.0), T + 2))
    A('v_fma_f32 v%d, -v%d, v%d, v%d' % (T + 2, T, T, T + 2))
    A('v_max_f32 v%d, 0, v%d' % (T + 2, T + 2))
    A('v_cvt_pk_bf16_f32 v%d, v%d, v%d' % (T + 4, T, T + 2))
    A('v_and_b32 v%d, s%d, v%d' % (T + 2, S_HIM, T + 4))
    A('v_lshlrev_b32 v%d, 16, v%d' % (T, T + 4))
    A('v_add_f32 v%d, %s, v%d' % (T + 2, fb(1e-5), T + 2))
    A('v_cvt_pk_bf16_f32 v%d, v%d, v%d' % (T + 4, T + 2, T + 2))
    A('v_lshlrev_b32 v%d, 16, v%d' % (T + 2, T + 4))
    A('v_sqrt_f32 v%d, v%d' % (T + 2, T + 2))
    A('v_cvt_pk_bf16_f32 v%d, v%d, v%d' % (T + 4, T + 2, T + 2))
    A('v_lshlrev_b32 v%d, 16, v%d' % (T + 2, T + 4))
    A('v_rcp_f32 v%d, v%d' % (S + 2, T + 2))
    A('v_sub_f32 v%d, 0, v%d' % (S, T))
    A('v_sub_f32 v%d, 0, v%d' % (S + 1, T))
    A('v_fma_f32 v%d, -v%d, v%d, 2.0' % (T + 4, T + 2, S + 2))
    A('v_mul_f32 v%d, v%d, v%d' % (S + 2, S + 2, T + 4))
    A('v_mov_b32 v%d, v%d' % (S + 3, S + 2))


_stamp_names = []


def stamp(A, name):
    if not STAMPS:
        return
    if name not in _stamp_names:
        _stamp_names.append(name)
    idx = _stamp_names.index(name)
    A('s_memrealtime s[0:1]')
    A('s_lshr_b32 s85, s%d, 18' % S_LAY)
    A('s_add_u32 s85, s85, %d' % idx)
    A('s_waitcnt lgkmcnt(0)')
    A('v_writelane_b32 v255, s0, s85')


_lab = [0]


def poll(A, voff, soff, tmp, wide=False):
    _lab[0] += 1
    L, D = 'L_poll%d' % _lab[0], 'L_polld%d' % _lab[0]
    A('s_mov_b32 s%d, 0' % S_CNT)
    A.pad(2)
    A.label(L)
    if wide:
        A('buffer_load_dwordx4 %s, v%d, %s, %s offen sc1' % (v(tmp, 4), voff, WSR, soff))
        A('buffer_load_dwordx4 %s, v%d, %s, %s offen offset:16 sc1' % (v(tmp + 4, 4), voff, WSR, soff))
        A('s_waitcnt vmcnt(0)')
        A('v_cmp_ne_u64 vcc, v[30:31], %s' % v(tmp, 2))
        A('v_cmp_ne_u64 s[10:11], v[30:31], %s' % v(tmp + 2, 2))
        A('v_cmp_ne_u64 s[12:13], v[30:31], %s' % v(tmp + 4, 2))
        A('v_cmp_ne_u64 s[14:15], v[30:31], %s' % v(tmp + 6, 2))
        A('s_or_b64 s[10:11], s[10:11], vcc')
        A('s_or_b64 s[12:13], s[12:13], s[14:15]')
        A('s_or_b64 vcc, s[10:11], s[12:13]')
    else:
        A('buffer_load_dwordx2 %s, v%d, %s, %s offen sc1' % (v(tmp, 2), voff, WSR, soff))
        A('s_waitcnt vmcnt(0)')
        A('v_cmp_ne_u64 vcc, v[30:31], %s' % v(tmp, 2))
    A('s_cmp_eq_u64 vcc, 0')
    A('s_cbranch_scc1 %s' % D)
    A('s_add_u32 s%d, s%d, 1' % (S_CNT, S_CNT))
    A('s_cmp_lt_u32 s%d, %d' % (S_CNT, SPIN_LIMIT))
    A('s_cbranch_scc1 %s' % L)
    A.label(D)
    A.pad(1)


def flag_store(A, sreg):
    A('s_mov_b64 exec, 1')
    A('buffer_store_dwordx2 v[30:31], off, %s, s%d sc1' % (WSR, sreg))
    A('s_mov_b64 exec, -1')


def xt_publish(A, P, flag_base_expr):
    A('ds_write_b128 v21, %s' % v(P, 4))
    A('ds_write_b128 v21, %s offset:512' % v(P + 4, 4))
    A('ds_write_b32 v22, v%d' % (P + 8))
    A('s_waitcnt lgkmcnt(0)')
    A('s_barrier')
    T = 200
    A('ds_read_b128 %s, v23' % v(T, 4))
    A('ds_read_b128 %s, v23 offset:512' % v(T + 4, 4))
    A('ds_read_b128 %s, v23 offset:1024' % v(T + 8, 4))
    A('s_add_u32 s9, s8, 8192')
    A('s_waitcnt lgkmcnt(2)')
    A('buffer_store_dwordx4 %s, v24, %s, s8 offen sc1' % (v(T, 4), WSR))
    A('s_waitcnt lgkmcnt(1)')
    A('buffer_store_dwordx4 %s, v24, %s, s9 offen sc1' % (v(T + 4, 4), WSR))
    _lab[0] += 1
    L = 'L_xt%d' % _lab[0]
    A('s_cmp_lg_u32 s3, 0')
    A('s_cbranch_scc1 %s' % L)
    A('s_add_u32 s9, s8, 16384')
    A('s_waitcnt lgkmcnt(0)')
    A('buffer_store_dwordx4 %s, v24, %s, s9 offen sc1' % (v(T + 8, 4), WSR))
    A.label(L)
    A('s_waitcnt lgkmcnt(0)')


def gen(A):
    A.raw('.amdgcn_target "amdgcn-amd-amdhsa--gfx950"')
    A.raw('.text')
    A.raw('.globl %s' % KNAME)
    A.raw('.p2align 8')
    A.raw('.type %s,@function' % KNAME)
    A.raw('%s:' % KNAME)
    A('s_cmp_ge_u32 s2, 256')
    A('s_cbranch_scc1 L_end')
    A('s_load_dwordx16 s[16:31], s[0:1], 0')
    A('s_load_dwordx8 s[32:39], s[0:1], 64')
    A('v_and_b32 v1, 63, v0')
    A('v_lshrrev_b32 v2, 6, v0')
    A('v_readfirstlane_b32 s3, v2')
    A('v_and_b32 v2, 31, v0')
    A('v_and_b32 v3, 15, v1')
    A('v_lshrrev_b32 v4, 4, v1')
    A('v_mov_b32 v255, 0')
    A('s_and_b32 s8, s2, 7')
    A('s_lshr_b32 s9, s2, 3')
    A('s_lshr_b32 s4, s9, 4')
    A('s_lshl_b32 s8, s8, 1')
    A('s_add_u32 s4, s4, s8')
    A('s_and_b32 s5, s9, 15')
    A('s_and_b32 s6, s3, 1')
    A('s_lshr_b32 s7, s3, 1')
    A('s_mov_b32 s%d, 0xffff0000' % S_HIM)
    A('s_mov_b32 s%d, 0x05040100' % S_PLO)
    A('s_mov_b32 s%d, 0x07060302' % S_PHI)
    A('s_mov_b32 s%d, 0' % S_LAY)
    A('s_waitcnt lgkmcnt(0)')
    srd(A, 40, P_WS, WS_SIZE)
    srd(A, 44, P_OUT, SZ)
    srd(A, 48, P_X, SZ)
    srd(A, 52, P_WQKV, 576 * 1728 * 2)
    srd(A, 56, P_WO, 576 * 576 * 2)
    srd(A, 60, P_BK, SZ)
    srd(A, 64, P_BV, SZ)
    srd(A, 68, P_SK, 576 * 8)
    srd(A, 72, P_SSMK, SZ)
    srd(A, 76, P_SSMD, 1152)
    srd(A, 80, P_DBG, 256)
    stamp(A, 'start')
    A('s_or_b32 s8, s2, s3')
    A('s_cmp_lg_u32 s8, 0')
    A('s_cbranch_scc1 L_notag')
    A('s_memrealtime s[84:85]')
    A('s_waitcnt lgkmcnt(0)')
    A('s_bitset1_b32 s85, 31')
    A('v_mov_b32 v30, s84')
    A('v_mov_b32 v31, s85')
    A('s_mov_b64 exec, 1')
    A('buffer_store_dwordx2 v[30:31], off, s[80:83], 0 sc1')
    A('s_mov_b64 exec, -1')
    A.label('L_notag')
    A('s_lshr_b32 s8, s5, 2')
    A('s_lshr_b32 s9, s5, 1')
    A('s_and_b32 s9, s9, 1')
    A('s_and_b32 s10, s5, 1')
    A('s_lshl_b32 s11, s4, 7')
    A('s_lshl_b32 s12, s8, 5')
    A('s_add_u32 s11, s11, s12')
    A('s_lshl_b32 s12, s10, 4')
    A('s_add_u32 s11, s11, s12')
    A('s_add_u32 s11, s11, s9')
    A('v_lshrrev_b32 v64, 5, v0')
    A('v_lshl_add_u32 v65, v64, 1, s11')
    A('v_mul_u32_u24 v65, 1152, v65')
    A('v_lshl_add_u32 v16, v2, 4, v65')
    A('v_lshl_add_u32 v17, v2, 2, v65')
    A('v_add_u32 v17, 1024, v17')
    XR = 44
    A('buffer_load_dwordx4 %s, v16, s[48:51], 0 offen' % v(XR, 4))
    A('buffer_load_dwordx4 %s, v16, s[48:51], 0 offen offset:512' % v(XR + 4, 4))
    A('buffer_load_dword v%d, v17, s[48:51], 0 offen' % (XR + 8))
    A('v_mul_u32_u24 v65, %d, v64' % XTP)
    A('v_lshl_add_u32 v21, v2, 4, v65')
    A('v_add_u32 v21, %d, v21' % XT)
    A('v_lshl_add_u32 v22, v2, 2, v65')
    A('v_add_u32 v22, %d, v22' % (XT + 1024))
    A('v_and_b32 v65, 7, v0')
    A('v_lshrrev_b32 v66, 3, v0')
    A('v_mul_u32_u24 v23, %d, v65' % XTP)
    A('v_lshl_add_u32 v23, v66, 4, v23')
    A('v_add_u32 v23, %d, v23' % XT)
    A('s_lshl_b32 s12, s4, 2')
    A('s_add_u32 s12, s12, s8')
    A('s_lshl_b32 s13, s12, 1')
    A('s_add_u32 s13, s13, s9')
    A('s_mul_i32 s14, s13, 18432')
    A('s_lshl_b32 s15, s10, 7')
    A('s_add_u32 s14, s14, s15')
    A('v_lshlrev_b32 v24, 8, v66')
    A('v_lshl_add_u32 v24, v65, 4, v24')
    A('v_add_u32 v24, s14, v24')
    A('s_mul_i32 s14, s13, %d' % (4 * 4608))
    A('s_add_u32 s14, s14, %d' % AB_)
    A('s_lshl_b32 s15, s10, 3')
    A('v_add_u32 v64, s15, v64')
    m18, sh18 = magic(18, 80)
    for n, (creg) in enumerate((18, 19, 20)):
        if n == 0:
            A('v_mov_b32 v65, v2')
        elif n == 1:
            A('v_add_u32 v65, 32, v2')
        else:
            A('v_lshrrev_b32 v65, 2, v2')
            A('v_add_u32 v65, 64, v65')
        A('v_mul_u32_u24 v66, %d, v65' % m18)
        A('v_lshrrev_b32 v66, %d, v66' % sh18)
        A('v_mul_u32_u24 v67, 18, v66')
        A('v_sub_u32 v65, v65, v67')
        A('v_mul_u32_u24 v66, 4608, v66')
        A('v_lshrrev_b32 v67, 2, v65')
        A('v_lshlrev_b32 v67, 10, v67')
        A('v_lshl_add_u32 v67, v64, 6, v67')
        A('v_and_b32 v68, 3, v65')
        A('v_lshl_add_u32 v67, v68, 4, v67')
        A('v_lshlrev_b32 v68, 5, v64')
        A('v_lshl_add_u32 v68, v65, 4, v68')
        A('v_add_u32 v68, %d, v68' % (4096 - 256))
        A('v_cmp_le_u32 vcc, 16, v65')
        A('v_cndmask_b32 v67, v67, v68, vcc')
        A('v_add_u32 v%d, v66, v67' % creg)
        A('v_add_u32 v%d, s14, v%d' % (creg, creg))
        if n == 2:
            A('v_and_b32 v65, 3, v2')
            A('v_lshl_add_u32 v20, v65, 2, v20')
    A('s_lshl_b32 s14, s12, 4')
    A('v_add_u32 v15, s14, v3')
    A('v_lshlrev_b32 v15, 3, v15')
    A('v_add_u32 v15, %d, v15' % FA_)
    A('s_lshl_b32 s86, s12, 1')
    A('s_add_u32 s86, s86, s10')
    A('s_lshl_b32 s86, s86, 5')
    A('s_lshl_b32 s14, s9, 4')
    A('s_add_u32 s86, s86, s14')
    A('s_add_u32 s86, s86, %d' % YT_)

    A('s_mul_i32 s8, s2, 81')
    A('v_add_u32 v64, s8, v0')
    m, sh = magic(288, 20736 + 256)
    A('v_mul_u32_u24 v65, %d, v64' % m)
    A('v_lshrrev_b32 v65, %d, v65' % sh)
    A('v_mul_u32_u24 v66, 288, v65')
    A('v_sub_u32 v66, v64, v66')
    A('v_lshrrev_b32 v67, 2, v65')
    A('v_and_b32 v68, 3, v65')
    A('v_mul_u32_u24 v69, 36, v67')
    A('v_lshl_add_u32 v69, v68, 3, v69')
    A('v_and_b32 v70, 2, v68')
    A('v_lshl_add_u32 v69, v70, 1, v69')
    A('v_mul_u32_u24 v70, 288, v67')
    A('v_mul_u32_u24 v71, 72, v68')
    A('v_add_u32 v70, v70, v71')
    A('v_subrev_u32 v70, 4592, v70')
    A('v_cmp_le_u32 vcc, 16, v67')
    A('v_cndmask_b32 v69, v69, v70, vcc')
    A('v_cndmask_b32 v71, 0, 1, vcc')
    A('v_mul_u32_u24 v69, 1152, v69')
    A('v_lshl_add_u32 v69, v66, 2, v69')
    A('v_cmp_gt_u32 vcc, 81, v0')
    A('v_mov_b32 v72, 0x%x' % OOB)
    A('v_cndmask_b32 v69, v72, v69, vcc')
    WOL = 96
    A('s_mov_b32 s8, %d' % (32 * 1152))
    A('v_mad_u32_u24 v70, v71, s8, v69')
    for j in range(8):
        A('s_mov_b32 s9, %d' % (j * 1152))
        A('buffer_load_dword v%d, v%d, s[56:59], s9 offen' % (WOL + j, 69 if j < 4 else 70))
    m72, sh72 = magic(72, 288)
    A('v_mul_u32_u24 v70, %d, v66' % m72)
    A('v_lshrrev_b32 v70, %d, v70' % sh72)
    A('v_mul_u32_u24 v71, 72, v70')
    A('v_sub_u32 v66, v66, v71')
    A('v_mul_u32_u24 v70, 9, v70')
    A('v_lshrrev_b32 v71, 4, v66')
    A('v_lshlrev_b32 v71, 1, v71')
    A('v_bfe_u32 v73, v66, 1, 1')
    A('v_add_u32 v71, v71, v73')
    A('v_bfe_u32 v73, v66, 2, 2')
    A('v_lshlrev_b32 v73, 2, v73')
    A('v_and_b32 v74, 1, v66')
    A('v_lshl_add_u32 v73, v74, 1, v73')
    A('v_subrev_u32 v74, 64, v66')
    A('v_lshlrev_b32 v74, 1, v74')
    A('v_cmp_le_u32 s[8:9], 64, v66')
    A('v_cndmask_b32 v71, v71, 8, s[8:9]')
    A('v_cndmask_b32 v73, v73, v74, s[8:9]')
    A('v_add_u32 v70, v70, v71')
    A('v_mul_u32_u24 v70, 18, v70')
    A('v_add_u32 v70, v70, v67')
    A('v_lshlrev_b32 v70, 6, v70')
    A('v_lshl_add_u32 v70, v68, 4, v70')
    A('v_add_u32 v70, v70, v73')
    A('v_lshlrev_b32 v70, 4, v70')
    A('v_add_u32 v70, 0x%x, v70' % WOF)
    A('v_cndmask_b32 v104, v72, v70, vcc')
    A('s_lshr_b32 s8, s2, 2')
    A('s_mul_i32 s8, s8, 9')
    A('s_and_b32 s9, s2, 3')
    A('s_lshl_b32 s10, s9, 1')
    A('s_add_u32 s87, s8, s10')
    A('s_add_u32 s88, s8, 8')
    A('v_lshlrev_b32 v64, 4, v0')
    A('v_add_u32 v65, 16, v64')
    HL = 108
    A('s_lshl_b32 s8, s87, 12')
    A('s_add_u32 s9, s8, 4096')
    A('s_lshl_b32 s10, s88, 12')
    for c, sr in enumerate((8, 9, 10)):
        A('buffer_load_dwordx4 %s, v64, s[72:75], s%d offen' % (v(HL + 6 * c, 4), sr))
        A('buffer_load_ushort v%d, v65, s[72:75], s%d offen' % (HL + 6 * c + 4, sr))
    A('v_add_u32 v66, s87, v1')
    A('v_cmp_eq_u32 vcc, 2, v1')
    A('v_mov_b32 v67, s88')
    A('v_cndmask_b32 v66, v66, v67, vcc')
    A('v_lshlrev_b32 v66, 1, v66')
    A('v_cmp_gt_u32 vcc, 3, v1')
    A('v_cndmask_b32 v66, v72, v66, vcc')
    A('buffer_load_ushort v62, v66, s[76:79], 0 offen')
    A('v_mov_b32 v128, v0')
    K, V_ = 130, 141

    def kv_loads():
        A('s_lshr_b32 s14, s2, 3')
        A('s_and_b32 s15, s2, 7')
        A('v_and_b32 v64, 7, v128')
        A('v_lshrrev_b32 v65, 3, v128')
        A('s_lshl_b32 s9, s14, 6')
        A('v_lshl_add_u32 v66, v64, 3, s9')
        A('s_mul_i32 s9, s15, 36')
        A('v_add_u32 v65, s9, v65')
        A('v_mul_u32_u24 v67, 1152, v66')
        A('v_lshl_add_u32 v67, v65, 2, v67')
        A('v_cmp_gt_u32 vcc, 288, v128')
        A('v_mov_b32 v72, 0x%x' % OOB)
        A('v_cndmask_b32 v67, v72, v67, vcc')
        A('v_add_u32 v68, 4608, v67')
        A('v_subrev_u32 v69, 3456, v67')
        A('v_cmp_eq_u32 s[10:11], 0, v66')
        A('v_cndmask_b32 v69, v69, v72, s[10:11]')
        for j in range(3):
            A('buffer_load_dword v%d, v69, s[60:63], 0 offen offset:%d' % (K + j, 1152 * j))
        for j in range(4):
            A('buffer_load_dword v%d, v67, s[60:63], 0 offen offset:%d' % (K + 3 + j, 1152 * j))
        for j in range(4):
            A('buffer_load_dword v%d, v68, s[60:63], 0 offen offset:%d' % (K + 7 + j, 1152 * j))
        for j in range(4):
            A('buffer_load_dword v%d, v67, s[64:67], 0 offen offset:%d' % (V_ + j, 1152 * j))
        for j in range(4):
            A('buffer_load_dword v%d, v68, s[64:67], 0 offen offset:%d' % (V_ + 4 + j, 1152 * j))
        A('v_lshlrev_b32 v64, 4, v65')
        A('v_cndmask_b32 v64, v72, v64, vcc')
        A('buffer_load_dwordx4 v[152:155], v64, s[68:71], 0 offen')
        A('v_lshlrev_b32 v129, 13, v65')
        A('v_sub_u32 v66, 2040, v66')
        A('v_lshl_add_u32 v129, v66, 1, v129')
        A('v_add_u32 v129, 0x%x, v129' % UR_)
        A('v_cndmask_b32 v129, v72, v129, vcc')

    def kv_compute():
        ST = 156
        for t in range(4):
            lo, hi = 152 + (t >> 1), 154 + (t >> 1)
            if t & 1:
                A('v_and_b32 v%d, s%d, v%d' % (ST + 2 * t, S_HIM, lo))
                A('v_and_b32 v%d, s%d, v%d' % (ST + 2 * t + 1, S_HIM, hi))
            else:
                A('v_lshlrev_b32 v%d, 16, v%d' % (ST + 2 * t, lo))
                A('v_lshlrev_b32 v%d, 16, v%d' % (ST + 2 * t + 1, hi))
        KU = 164
        for j in range(11):
            unpack(A, KU + 2 * j, K + j)
        R = 186
        for n0 in range(0, 8, 2):
            regs = [(196, 198, 200), (202, 204, 206)]
            for u in range(2):
                acc, p, t = regs[u]
                A(pk('mul', acc, KU + 2 * (n0 + u), ST + 6))
            for u in range(2):
                acc, p, t = regs[u]
                rnd_pair(A, acc, t)
            for tt in range(1, 4):
                for u in range(2):
                    acc, p, t = regs[u]
                    A(pk('mul', p, KU + 2 * (n0 + u + tt), ST + 2 * (3 - tt)))
                for u in range(2):
                    acc, p, t = regs[u]
                    rnd_pair(A, p, t)
                for u in range(2):
                    acc, p, t = regs[u]
                    A(pk('add', acc, acc, p))
                for u in range(2):
                    acc, p, t = regs[u]
                    rnd_pair(A, acc, t)
            for u in range(2):
                acc, p, t = regs[u]
                unpack(A, p, V_ + n0 + u)
                A(pk('mul', acc, acc, p))
                A('v_cvt_pk_bf16_f32 v%d, v%d, v%d' % (R + n0 + u, acc, acc + 1))
        for i in range(4):
            A('v_perm_b32 v%d, v%d, v%d, s%d' % (208 + i, R + 6 - 2 * i, R + 7 - 2 * i, S_PLO))
            A('v_perm_b32 v%d, v%d, v%d, s%d' % (212 + i, R + 6 - 2 * i, R + 7 - 2 * i, S_PHI))
        A('buffer_store_dwordx4 v[208:211], v129, %s, 0 offen sc1' % WSR)
        A('v_add_u32 v129, 4096, v129')
        A('buffer_store_dwordx4 v[212:215], v129, %s, 0 offen sc1' % WSR)
    kv_loads()
    A('v_lshrrev_b32 v64, 2, v1')
    A('v_mul_u32_u24 v64, 3456, v64')
    A('v_bfe_u32 v65, v1, 1, 1')
    A('v_lshrrev_b32 v66, 5, v1')
    A('v_xor_b32 v65, v65, v66')
    A('v_mul_u32_u24 v65, 40, v65')
    A('v_add_u32 v64, v64, v65')
    A('v_and_b32 v65, 1, v1')
    A('v_lshl_add_u32 v64, v65, 4, v64')
    A('s_mul_i32 s8, s5, 72')
    A('v_add_u32 v64, s8, v64')
    m6, sh6 = magic(6, 192)
    for i3 in range(3):
        A('v_add_u32 v65, %d, v1' % (64 * i3))
        A('v_mul_u32_u24 v66, %d, v65' % m6)
        A('v_lshrrev_b32 v66, %d, v66' % sh6)
        A('v_mul_u32_u24 v67, 6, v66')
        A('v_sub_u32 v65, v65, v67')
        A('v_and_b32 v67, 19, v66')
        A('v_bfe_u32 v68, v66, 2, 1')
        A('v_lshl_add_u32 v67, v68, 3, v67')
        A('v_bfe_u32 v68, v66, 3, 1')
        A('v_lshl_add_u32 v67, v68, 2, v67')
        A('v_mul_u32_u24 v67, 3456, v67')
        A('v_lshrrev_b32 v68, 1, v65')
        A('v_mul_u32_u24 v68, 1152, v68')
        A('v_add_u32 v67, v67, v68')
        A('v_and_b32 v68, 1, v65')
        A('v_lshl_add_u32 v67, v68, 2, v67')
        A('v_add_u32 v67, 32, v67')
        A('v_add_u32 v%d, s8, v67' % (73 + i3))
    A('s_mul_i32 s12, s3, %d' % KSB)
    A('s_mul_i32 s13, s3, %d' % (32 * 3456))

    def wdma(n):
        for part in range(3):
            for rh in range(2):
                A('s_add_u32 m0, s12, %d' % (4 * n * KSB + part * 2048 + rh * 1024))
                A('s_add_u32 s9, s13, %d' % ((128 * n + 16 * rh) * 3456 + part * 1152))
                A('buffer_load_dwordx4 v64, s[52:55], s9 offen lds')
        A('s_add_u32 s9, s13, %d' % (128 * n * 3456))
        for i3 in range(3):
            A('s_add_u32 m0, s12, %d' % (4 * n * KSB + 6144 + 256 * i3))
            A('buffer_load_dword v%d, s[52:55], s9 offen lds' % (73 + i3))
    wdma(0)
    wdma(1)
    A('s_waitcnt vmcnt(53)')
    stamp(A, 'x_arrived')
    X = 216
    for j in range(9):
        unpack(A, X + 2 * j, XR + j)
    ln_stats(A, X, 234, 238)
    PKD = 244
    for j in range(9):
        A(pk('add', X + 2 * j, X + 2 * j, 234))
    for j in range(9):
        rnd_pair(A, X + 2 * j, PKD + j)
    for j in range(9):
        A(pk('mul', X + 2 * j, X + 2 * j, 236))
    for j in range(9):
        A('v_cvt_pk_bf16_f32 v%d, v%d, v%d' % (PKD + j, X + 2 * j, X + 2 * j + 1))
    A('buffer_load_dwordx2 v[30:31], off, s[80:83], 0 sc1')
    A('s_mov_b32 s8, %d' % XNF)
    xt_publish(A, PKD, None)
    stamp(A, 'xn_stored')
    wdma(2)
    wdma(3)
    A('s_cmp_ge_u32 s3, 2')
    A('s_cbranch_scc1 L_dma_done')
    wdma(4)
    A.label('L_dma_done')
    A('s_lshl_b32 s8, s4, 2')
    A('s_lshl_b32 s9, s7, 1')
    A('s_add_u32 s9, s9, s8')
    A('s_lshl_b32 s9, s9, 1')
    A('s_add_u32 s9, s9, s6')
    A('s_mul_i32 s9, s9, 18432')
    A('v_lshlrev_b32 v27, 4, v1')
    A('v_add_u32 v5, s9, v27')
    A('s_sub_u32 s9, s8, 1')
    A('s_lshl_b32 s9, s9, 1')
    A('v_lshrrev_b32 v64, 3, v3')
    A('v_add_u32 v64, s9, v64')
    A('v_mul_u32_u24 v64, 18432, v64')
    A('v_lshl_add_u32 v64, v4, 8, v64')
    A('v_and_b32 v65, 7, v3')
    A('v_lshl_add_u32 v64, v65, 4, v64')
    A('v_add_u32 v6, 128, v64')
    A('s_cmp_eq_u32 s4, 0')
    A('s_cselect_b64 vcc, -1, 0')
    A('v_mov_b32 v72, 0x%x' % OOB)
    A('v_cndmask_b32 v6, v6, v72, vcc')
    A('v_bfe_u32 v64, v1, 2, 2')
    A('v_and_b32 v65, 3, v1')
    A('v_lshl_add_u32 v66, v4, 3, v64')
    A('v_lshlrev_b32 v66, 6, v66')
    A('v_and_b32 v67, 1, v4')
    A('v_lshl_add_u32 v66, v67, 5, v66')
    A('v_lshl_add_u32 v7, v65, 3, v66')
    A('v_xor_b32 v8, 32, v7')
    A('v_lshl_add_u32 v66, v67, 2, v64')
    A('v_lshrrev_b32 v67, 1, v4')
    A('v_lshl_add_u32 v66, v67, 4, v66')
    A('v_mul_u32_u24 v66, 24, v66')
    A('v_min_u32 v65, 2, v65')
    A('v_lshl_add_u32 v66, v65, 3, v66')
    A('v_add_u32 v9, 6144, v66')
    A('s_cmp_eq_u32 s3, 1')
    A('s_cselect_b64 vcc, -1, 0')
    A('v_cndmask_b32 v10, v7, v8, vcc')
    A('v_add_u32 v10, 2048, v10')
    A('v_add_u32 v11, 256, v10')
    A('s_cmp_eq_u32 s3, 2')
    A('s_cselect_b64 vcc, -1, 0')
    A('v_cndmask_b32 v10, v10, v9, vcc')
    A('v_add_u32 v64, 192, v9')
    A('v_cndmask_b32 v11, v11, v64, vcc')
    A('s_cmp_eq_u32 s6, 1')
    A('s_cselect_b64 vcc, -1, 0')
    A('v_cndmask_b32 v12, v7, v8, vcc')
    A('v_add_u32 v12, 4096, v12')
    A('v_lshrrev_b32 v64, 3, v1')
    A('v_and_b32 v64, 1, v64')
    A('v_lshlrev_b32 v64, 2, v64')
    A('v_bfe_u32 v65, v1, 2, 1')
    A('v_add_u32 v64, v64, v65')
    A('s_lshl_b32 s8, s7, 3')
    A('s_lshl_b32 s9, s6, 1')
    A('s_add_u32 s8, s8, s9')
    A('s_lshl_b32 s9, s4, 4')
    A('s_add_u32 s8, s8, s9')
    A('v_add_u32 v64, s8, v64')
    A('v_lshlrev_b32 v65, 1, v65')
    A('s_sub_u32 s9, s9, 3')
    A('v_add_u32 v65, s9, v65')
    A('v_subrev_u32 v66, 16, v1')
    A('v_cmp_gt_u32 vcc, 8, v66')
    A('s_cmp_eq_u32 s4, 0')
    A('s_cselect_b64 vcc, 0, vcc')
    A('v_cndmask_b32 v64, v64, v65, vcc')
    A('v_and_b32 v65, 3, v1')
    A('v_lshl_add_u32 v64, v64, 2, v65')
    A('v_lshlrev_b32 v13, 3, v64')
    A('v_add_u32 v13, %d, v13' % FX_)
    A('s_lshr_b32 s8, s5, 3')
    A('s_lshl_b32 s8, s8, 1')
    A('v_lshrrev_b32 v64, 1, v2')
    A('s_lshl_b32 s9, s4, 4')
    A('v_add_u32 v64, s9, v64')
    A('v_lshlrev_b32 v64, 2, v64')
    A('v_and_b32 v65, 1, v1')
    A('v_add_u32 v64, v64, v65')
    A('v_add_u32 v64, s8, v64')
    A('v_lshlrev_b32 v14, 3, v64')
    A('v_add_u32 v14, %d, v14' % FO_)
    A('s_lshr_b32 s8, s5, 2')
    A('s_lshl_b32 s9, s4, 2')
    A('s_add_u32 s8, s8, s9')
    A('s_lshl_b32 s9, s8, 5')
    A('v_add_u32 v64, s9, v3')
    A('v_lshlrev_b32 v25, 6, v64')
    A('v_lshl_add_u32 v25, v4, 4, v25')
    A('s_lshl_b32 s10, s3, 19')
    A('s_add_u32 s10, s10, %d' % OM_)
    A('v_add_u32 v25, s10, v25')
    A('s_lshl_b32 s10, s6, 4')
    A('v_add_u32 v64, s10, v64')
    A('v_lshlrev_b32 v26, 3, v64')
    A('v_lshl_add_u32 v26, v4, 15, v26')
    A('s_lshl_b32 s10, s7, 17')
    A('s_add_u32 s10, s10, %d' % OL_)
    A('v_add_u32 v26, s10, v26')
    A('s_lshl_b32 s9, s8, 3')
    A('s_and_b32 s10, s5, 3')
    A('s_add_u32 s9, s9, s10')
    A('s_mul_i32 s9, s9, 4608')
    A('s_add_u32 s9, s9, %d' % AB_)
    A('s_lshl_b32 s10, s3, 10')
    A('s_add_u32 s10, s10, s9')
    A('v_lshlrev_b32 v28, 6, v3')
    A('v_lshl_add_u32 v28, v4, 4, v28')
    A('v_add_u32 v28, s10, v28')
    A('s_mul_i32 s10, s6, %d' % (4 * 4608))
    A('s_add_u32 s10, s10, s9')
    A('s_add_u32 s10, s10, 4096')
    A('v_lshlrev_b32 v29, 5, v3')
    A('v_lshl_add_u32 v29, v4, 3, v29')
    A('v_add_u32 v29, s10, v29')
    A('s_and_b32 s10, s5, 3')
    A('s_mul_i32 s10, s10, 9')
    A('s_lshl_b32 s11, s3, 1')
    A('s_add_u32 s11, s11, s10')
    A('s_mul_i32 s89, s11, 18432')
    A('s_add_u32 s89, s89, 0x%x' % WOF)
    A('s_add_u32 s10, s10, 8')
    A('s_mul_i32 s92, s10, 18432')
    A('s_add_u32 s92, s92, 0x%x' % WOF)
    A('s_lshl_b32 s8, s4, 7')
    A('s_lshl_b32 s9, s7, 6')
    A('s_add_u32 s8, s8, s9')
    A('s_lshl_b32 s9, s6, 4')
    A('s_add_u32 s8, s8, s9')
    A('v_add_u32 v64, s8, v3')
    A('v_and_b32 v65, 1, v4')
    A('v_lshlrev_b32 v65, 1, v65')
    A('v_lshrrev_b32 v66, 1, v4')
    A('v_add_u32 v65, v65, v66')
    A('v_lshlrev_b32 v32, 6, v64')
    A('v_lshl_add_u32 v32, v65, 4, v32')
    A('s_lshl_b32 s9, s5, 17')
    A('s_add_u32 s9, s9, %d' % OM_)
    A('v_add_u32 v32, s9, v32')
    A('v_lshlrev_b32 v33, 3, v64')
    A('s_lshl_b32 s9, s5, 14')
    A('s_add_u32 s9, s9, %d' % OL_)
    A('v_add_u32 v33, s9, v33')
    A('v_lshlrev_b32 v64, 3, v1')
    A('s_mul_i32 s8, s3, %d' % XRS)
    A('s_add_u32 s8, s8, %d' % (XCH + XRS))
    A('v_add_u32 v34, s8, v64')
    A('s_cmp_eq_u32 s3, 1')
    A('s_cselect_b32 s8, 512, 0')
    A('s_cmp_eq_u32 s3, 2')
    A('s_cselect_b32 s8, %d, s8' % (5 * XRS))
    A('s_add_u32 s8, s8, %d' % XCH)
    A('v_add_u32 v35, s8, v64')
    A('s_lshl_b32 s8, s6, 9')
    A('s_add_u32 s8, s8, %d' % (XCH + 1024))
    A('v_add_u32 v36, s8, v64')
    A('s_cmp_eq_u32 s3, 2')
    A('s_cselect_b32 s8, 0, %d' % (5 * XRS))
    A('s_add_u32 s8, s8, %d' % XCH)
    A('v_add_u32 v37, s8, v64')
    A('s_add_u32 s8, s6, 1')
    A('s_mul_i32 s8, s8, %d' % XRS)
    A('s_cmp_eq_u32 s7, 0')
    A('s_cselect_b32 s8, 0, s8')
    A('s_add_u32 s8, s8, %d' % XCH)
    A('v_add_u32 v38, s8, v64')
    E = 40
    A('v_subrev_u32 v64, 32, v1')
    A('v_and_b32 v65, 1, v64')
    A('v_lshlrev_b32 v65, 4, v65')
    A('v_mov_b32 v66, 0x3f80')
    A('v_lshlrev_b32 v66, v65, v66')
    A('v_lshrrev_b32 v64, 1, v64')
    A('v_cmp_eq_u32 vcc, 0, v64')
    A('v_cndmask_b32 v%d, 0, v66, vcc' % E)
    A('v_cmp_eq_u32 vcc, 1, v64')
    A('v_cndmask_b32 v%d, 0, v66, vcc' % (E + 1))
    A('v_mov_b32 v%d, 0' % (E + 2))
    A('v_mov_b32 v%d, 0' % (E + 3))
    A('v_cmp_gt_u32 s[%d:%d], 16, v1' % (S_G0, S_G0 + 1))
    A('v_lshlrev_b32 v64, 2, v4')
    A('s_lshl_b32 s12, s6, 3')
    for r in range(4):
        A('v_add_u32 v65, %d, v64' % r)
        A('v_sub_u32 v66, v3, v65')
        A('v_cmp_ge_u32 s[%d:%d], 7, v66' % (16 + 2 * r, 17 + 2 * r))
        A('v_add_u32 v66, 9, v3')
        A('v_cmp_ge_u32 s[%d:%d], v65, v66' % (24 + 2 * r, 25 + 2 * r))
        A('v_subrev_u32 v65, s12, v65')
        A('v_sub_u32 v66, v65, v3')
        A('v_cmp_ge_u32 vcc, 7, v65')
        A('v_cmp_lt_i32 s[14:15], 0, v66')
        A('s_and_b64 s[14:15], s[14:15], vcc')
        A('s_cmp_eq_u32 s4, 0')
        A('s_cselect_b64 s[14:15], 0, s[14:15]')
        A('s_cmp_eq_u32 s7, 0')
        A('s_cselect_b64 s[%d:%d], s[14:15], s[%d:%d]' % (32 + 2 * r, 33 + 2 * r, 24 + 2 * r, 25 + 2 * r))
    A('s_mov_b32 s%d, %s' % (S_SCL, fb(18 ** -0.5)))
    A('s_mov_b32 s%d, %s' % (S_SCL + 1, fb(18 ** -0.5)))
    A('s_mov_b32 s%d, %s' % (S_L2E, fb(1.4426950408889634)))
    A('s_mov_b32 s%d, %s' % (S_L2E + 1, fb(1.4426950408889634)))
    A('s_waitcnt vmcnt(0)')
    A('s_mov_b32 s%d, 0' % S_CNT)
    A.pad(2)
    A.label('L_tag')
    A('v_cmp_gt_i32 vcc, 0, v31')
    A('s_cmp_lg_u64 vcc, 0')
    A('s_cbranch_scc1 L_tagok')
    A('buffer_load_dwordx2 v[30:31], off, s[80:83], 0 sc1')
    A('s_waitcnt vmcnt(0)')
    A('s_add_u32 s%d, s%d, 1' % (S_CNT, S_CNT))
    A('s_cmp_lt_u32 s%d, %d' % (S_CNT, SPIN_LIMIT))
    A('s_cbranch_scc1 L_tag')
    A.label('L_tagok')
    A('s_lshl_b32 s84, s4, 4')
    A('s_add_u32 s84, s84, s5')
    A('s_lshl_b32 s84, s84, 2')
    A('s_add_u32 s84, s84, s3')
    A('s_lshl_b32 s84, s84, 3')
    A('s_add_u32 s8, s84, %d' % FX_)
    flag_store(A, 8)
    stamp(A, 'fx_pub')
    for i in range(4):
        A('v_perm_b32 v%d, v%d, v%d, s%d' % (64 + i, WOL + 1 + 2 * i, WOL + 2 * i, S_PLO))
        A('v_perm_b32 v%d, v%d, v%d, s%d' % (68 + i, WOL + 1 + 2 * i, WOL + 2 * i, S_PHI))
    A('buffer_store_dwordx4 v[64:67], v104, %s, 0 offen sc1' % WSR)
    A('buffer_store_dwordx4 v[68:71], v104, %s, 0 offen offset:16 sc1' % WSR)
    for c in range(3):
        b = HL + 6 * c
        for d in range(4):
            A('v_accvgpr_write_b32 a%d, v%d' % (216 + 8 * c + d, b + d))
        for d in range(4):
            A('v_alignbit_b32 v%d, v%d, v%d, 16' % (b + d, b + d + 1, b + d))
        for d in range(4):
            A('v_accvgpr_write_b32 a%d, v%d' % (220 + 8 * c + d, b + d))
    kv_compute()
    A('s_cmp_lg_u32 s3, 0')
    A('s_cbranch_scc1 L_kv_done')
    A('v_add_u32 v128, 256, v0')
    kv_loads()
    A('s_waitcnt vmcnt(0)')
    kv_compute()
    A.label('L_kv_done')
    A('s_waitcnt vmcnt(0)')
    A('s_barrier')
    A('s_cmp_lg_u32 s3, 0')
    A('s_cbranch_scc1 L_nofp')
    A('s_lshl_b32 s8, s2, 3')
    A('s_add_u32 s8, s8, 0x%x' % FP_)
    flag_store(A, 8)
    A.label('L_nofp')
    stamp(A, 'fp_pub')

    A.pad(4)
    A.label('L_layer')
    poll(A, 13, 's%d' % S_LAY, 64)
    stamp(A, 'fx_seen')
    XA, XB, XH = 0, 72, 144
    for ks in range(18):
        if ks % 4 == 0:
            A('s_add_u32 s8, s%d, %d' % (S_LAY, 1024 * ks))
            A('s_add_u32 s9, s%d, %d' % (S_LAY, 1024 * ks + 36864))
        o = 1024 * (ks % 4)
        A('buffer_load_dwordx4 %s, v5, %s, s8 offen offset:%d sc1' % (a(XA + 4 * ks, 4), WSR, o))
        A('buffer_load_dwordx4 %s, v5, %s, s9 offen offset:%d sc1' % (a(XB + 4 * ks, 4), WSR, o))
        A('buffer_load_dwordx4 %s, v6, %s, s8 offen offset:%d sc1' % (a(XH + 4 * ks, 4), WSR, o))
    ACC = 64
    WB = [128, 164]

    def wreads(ks):
        o = (ks % 9) * KSB
        b = WB[ks & 1]
        L = []
        for nt in range(6):
            part, h = nt >> 1, nt & 1
            L.append('ds_read_b64_tr_b16 %s, v%d offset:%d' % (v(b + 4 * nt, 2), 7 + h, o + 2048 * part))
            L.append('ds_read_b64_tr_b16 %s, v%d offset:%d' % (v(b + 4 * nt + 2, 2), 7 + h, o + 2048 * part + 256))
        L.append('ds_read_b64_tr_b16 %s, v9 offset:%d' % (v(b + 24, 2), o))
        L.append('ds_read_b64_tr_b16 %s, v9 offset:%d' % (v(b + 26, 2), o + 192))
        L.append('ds_read_b64_tr_b16 %s, v10 offset:%d' % (v(b + 28, 2), o))
        L.append('ds_read_b64_tr_b16 %s, v11 offset:%d' % (v(b + 30, 2), o))
        L.append('ds_read_b64_tr_b16 %s, v12 offset:%d' % (v(b + 32, 2), o))
        L.append('ds_read_b64_tr_b16 %s, v12 offset:%d' % (v(b + 34, 2), o + 256))
        return L
    for r in wreads(0):
        A(r)
    for ks in range(18):
        nxt = wreads(ks + 1) if ks < 17 else []
        A('s_waitcnt vmcnt(%d) lgkmcnt(0)' % (51 - 3 * ks))
        if ks == 8:
            for r in range(7, 13):
                A('v_add_u32 v%d, %d, v%d' % (r, 9 * KSB, r))
        b = WB[ks & 1]
        mf = []
        for T, X_ in ((0, XA), (1, XB)):
            for nt in range(7):
                d = v(ACC + 28 * T + 4 * nt, 4)
                c = '0' if ks == 0 else d
                w, x = v(b + 4 * nt, 4), a(X_ + 4 * ks, 4)
                if nt in (4, 5):
                    mf.append('v_mfma_f32_16x16x32_bf16 %s, %s, %s, %s' % (d, x, w, c))
                else:
                    mf.append('v_mfma_f32_16x16x32_bf16 %s, %s, %s, %s' % (d, w, x, c))
        d = v(120, 4)
        mf.append('v_mfma_f32_16x16x32_bf16 %s, %s, %s, %s' % (d, v(b + 28, 4), a(XH + 4 * ks, 4), '0' if ks == 0 else d))
        d = v(124, 4)
        mf.append('v_mfma_f32_16x16x32_bf16 %s, %s, %s, %s' % (d, a(XH + 4 * ks, 4), v(b + 32, 4), '0' if ks == 0 else d))
        k = 0
        for i, m_ in enumerate(mf):
            A(m_)
            for _ in range(2 if i < 2 else 1):
                if k < len(nxt):
                    A(nxt[k])
                    k += 1
    for r in range(7, 13):
        A('v_subrev_u32 v%d, %d, v%d' % (r, 9 * KSB, r))
    stamp(A, 'gemm_done')
    A('s_cmp_lg_u32 s%d, 0' % S_LAY)
    A('s_cbranch_scc1 L_fp_ok')
    A('v_lshlrev_b32 v200, 5, v1')
    A('s_mov_b32 s8, 0x%x' % FP_)
    poll(A, 200, 's8', 204, wide=True)
    A('v_lshlrev_b32 v200, 4, v0')
    A('s_lshl_b32 s8, s87, 12')
    A('s_add_u32 s8, s8, 0x%x' % UR_)
    A('s_add_u32 s9, s8, 4096')
    A('s_lshl_b32 s10, s88, 12')
    A('s_add_u32 s10, s10, 0x%x' % UR_)
    for c in range(3):
        A('buffer_load_dwordx4 %s, v200, %s, s%d offen sc1' % (a(240 + 4 * c, 4), WSR, 8 + c))
    A.label('L_fp_ok')
    A.pad(2)
    A('s_add_u32 s8, s89, 0')
    A('s_add_u32 s9, s89, 18432')
    A('s_add_u32 s10, s92, 0')
    for ks in range(18):
        for j in range(3):
            if ks % 4 == 0 and ks:
                A('s_add_u32 s%d, s%d, 4096' % (8 + j, 8 + j))
            A('buffer_load_dwordx4 %s, v27, %s, s%d offen offset:%d sc1' % (a(72 * j + 4 * ks, 4), WSR, 8 + j, 1024 * (ks % 4)))
    QF = lambda T, h: 128 + 4 * (2 * T + h)
    KF = lambda U, h: 144 + 4 * (2 * U + h)
    VF = lambda h: 168 + 6 * h
    VL = 180
    LT = lambda T: 188 + 4 * T
    H2P = 200
    KL = 202
    DT = 208

    def cvt2(d, src):
        A('v_cvt_pk_bf16_f32 v%d, v%d, v%d' % (d, src, src + 1))
        A('v_cvt_pk_bf16_f32 v%d, v%d, v%d' % (d + 1, src + 2, src + 3))
    for T in range(2):
        cvt2(LT(T), ACC + 28 * T + 24)
        A('v_mov_b32 v%d, 0' % (LT(T) + 2))
        A('v_mov_b32 v%d, 0' % (LT(T) + 3))
    cvt2(LT(2), 120)
    A('v_mov_b32 v%d, 0' % (LT(2) + 2))
    A('v_mov_b32 v%d, 0' % (LT(2) + 3))
    for T in range(3):
        A('v_mfma_f32_16x16x32_bf16 %s, %s, %s, 0' % (v(DT + 4 * T, 4), v(LT(T), 4), v(E, 4)))
    cvt2(H2P, 124)
    for T in range(2):
        base = ACC + 28 * T
        for h in range(2):
            cvt2(QF(T, h), base + 4 * h)
            cvt2(KF(1 + T, h), base + 8 + 4 * h)
            A('v_mov_b32 v%d, v%d' % (QF(T, h) + 2, LT(T) + h))
            A('v_mov_b32 v%d, v%d' % (KF(1 + T, h) + 2, LT(T) + h))
            A('v_permlane16_swap_b32 v%d, v%d' % (QF(T, h) + 2, KF(1 + T, h) + 2))
            A('v_cndmask_b32 v%d, 0, v%d, s[%d:%d]' % (QF(T, h) + 2, QF(T, h) + 2, S_G0, S_G0 + 1))
            A('v_mov_b32 v%d, 0' % (QF(T, h) + 3))
            A('v_mov_b32 v%d, 0' % (KF(1 + T, h) + 3))
            cvt2(VF(h) + 2 + 2 * T, base + 16 + 4 * h)
    for h in range(2):
        A('v_mov_b32 v%d, v%d' % (204 + h, LT(2) + h))
        A('v_mov_b32 v%d, v%d' % (KL + h, LT(2) + h))
        A('v_permlane16_swap_b32 v%d, v%d' % (204 + h, KL + h))
        A('v_mov_b32 v%d, 0' % (KF(0, h) + 3))
    cvt2(VL + 2, DT)
    cvt2(VL + 4, DT + 4)
    cvt2(DT + 8, DT + 8)
    A('v_mov_b32 v204, v%d' % (KF(2, 0) + 2))
    A('v_mov_b32 v205, v%d' % (KF(2, 1) + 2))
    A('ds_write_b64 v34, %s offset:0' % v(KF(2, 0), 2))
    A('ds_write_b64 v34, %s offset:512' % v(KF(2, 1), 2))
    A('ds_write_b64 v34, %s offset:1024' % v(VF(0) + 4, 2))
    A('ds_write_b64 v34, %s offset:1536' % v(VF(1) + 4, 2))
    A('ds_write_b64 v34, %s offset:2048' % v(VL + 4, 2))
    A('ds_write_b64 v34, v[204:205] offset:2560')
    A('ds_write_b64 v35, %s' % v(LT(2), 2))
    A('ds_write_b64 v36, %s' % v(H2P, 2))
    A('ds_write_b64 v37, %s offset:2048' % v(DT + 8, 2))
    A('ds_write_b64 v37, %s offset:2560' % v(KL, 2))
    SP = lambda T, h: 64 + 8 * (2 * T + h)
    for T in range(2):
        for h in range(2):
            A('v_mfma_f32_16x16x32_bf16 %s, %s, %s, 0' % (v(SP(T, h) + 4, 4), v(KF(1 + T, h), 4), v(QF(T, h), 4)))
    for h in range(2):
        A('v_mfma_f32_16x16x32_bf16 %s, %s, %s, 0' % (v(SP(1, h), 4), v(KF(1, h), 4), v(QF(1, h), 4)))
    A('s_waitcnt lgkmcnt(0)')
    A('s_barrier')
    A('ds_read_b64 %s, v38 offset:0' % v(KF(0, 0), 2))
    A('ds_read_b64 %s, v38 offset:512' % v(KF(0, 1), 2))
    A('ds_read_b64 v[204:205], v38 offset:2560')
    A('ds_read_b64 %s, v38 offset:1024' % v(VF(0), 2))
    A('ds_read_b64 %s, v38 offset:1536' % v(VF(1), 2))
    A('ds_read_b64 %s, v38 offset:2048' % v(VL, 2))
    NEG = 100
    A('v_mov_b32 v%d, %s' % (NEG, fb(-1e30)))
    PF = lambda T, h: 208 + 4 * (2 * T + h)
    SCL = 's[%d:%d]' % (S_SCL, S_SCL + 1)
    L2E = 's[%d:%d]' % (S_L2E, S_L2E + 1)

    def softmax2(T):
        Ss = [SP(T, 0), SP(T, 1)]
        ts = [102, 108]
        for S, t in zip(Ss, ts):
            for q in range(4):
                rnd_pair(A, S + 2 * q, t + q)
        for S, t in zip(Ss, ts):
            for q in range(4):
                A(pk('mul', S + 2 * q, S + 2 * q, SCL))
        for S, t in zip(Ss, ts):
            for q in range(4):
                rnd_pair(A, S + 2 * q, t + q)
        pm = 32 if T == 0 else 24
        for S, t in zip(Ss, ts):
            for r in range(4):
                A('v_cndmask_b32 v%d, v%d, v%d, s[%d:%d]' % (S + r, NEG, S + r, pm + 2 * r, pm + 2 * r + 1))
                A('v_cndmask_b32 v%d, v%d, v%d, s[%d:%d]' % (S + 4 + r, NEG, S + 4 + r, 16 + 2 * r, 17 + 2 * r))
        for S, t in zip(Ss, ts):
            A('v_max3_f32 v%d, v%d, v%d, v%d' % (t, S, S + 1, S + 2))
            A('v_max3_f32 v%d, v%d, v%d, v%d' % (t + 1, S + 3, S + 4, S + 5))
        for S, t in zip(Ss, ts):
            A('v_max3_f32 v%d, v%d, v%d, v%d' % (t, t, S + 6, S + 7))
        for S, t in zip(Ss, ts):
            A('v_max_f32 v%d, v%d, v%d' % (t, t, t + 1))
        for sw in ('v_permlane16_swap_b32', 'v_permlane32_swap_b32'):
            for S, t in zip(Ss, ts):
                A('v_mov_b32 v%d, v%d' % (t + 1, t))
            for S, t in zip(Ss, ts):
                A('%s v%d, v%d' % (sw, t, t + 1))
            for S, t in zip(Ss, ts):
                A('v_max_f32 v%d, v%d, v%d' % (t, t, t + 1))
        for S, t in zip(Ss, ts):
            A('v_mul_f32 v%d, s%d, v%d' % (t, S_L2E, t))
        for S, t in zip(Ss, ts):
            A('v_sub_f32 v%d, 0, v%d' % (t, t))
        for S, t in zip(Ss, ts):
            A('v_mov_b32 v%d, v%d' % (t + 1, t))
        for S, t in zip(Ss, ts):
            for q in range(4):
                A(pk('fma', S + 2 * q, S + 2 * q, L2E, t))
        for S, t in zip(Ss, ts):
            for r in range(8):
                A('v_exp_f32 v%d, v%d' % (S + r, S + r))
        for S, t in zip(Ss, ts):
            A(pk('add', t, S, S + 2))
            A(pk('add', t + 2, S + 4, S + 6))
        for S, t in zip(Ss, ts):
            A(pk('add', t, t, t + 2))
        for S, t in zip(Ss, ts):
            A('v_add_f32 v%d, v%d, v%d' % (t, t, t + 1))
        for sw in ('v_permlane16_swap_b32', 'v_permlane32_swap_b32'):
            for S, t in zip(Ss, ts):
                A('v_mov_b32 v%d, v%d' % (t + 1, t))
            for S, t in zip(Ss, ts):
                A('%s v%d, v%d' % (sw, t, t + 1))
            for S, t in zip(Ss, ts):
                A('v_add_f32 v%d, v%d, v%d' % (t, t, t + 1))
        for S, t in zip(Ss, ts):
            A('v_rcp_f32 v%d, v%d' % (t, t))
        for S, t in zip(Ss, ts):
            A('v_mov_b32 v%d, v%d' % (t + 1, t))
        for h, (S, t) in enumerate(zip(Ss, ts)):
            for q in range(4):
                A(pk('mul', S + 2 * q, S + 2 * q, t))
        for h, (S, t) in enumerate(zip(Ss, ts)):
            for q in range(4):
                A('v_cvt_pk_bf16_f32 v%d, v%d, v%d' % (PF(T, h) + q, S + 2 * q, S + 2 * q + 1))
    OMr = lambda T, h: 224 + 4 * (2 * T + h)
    OLr = lambda T, h: 112 + 4 * h

    def pv_and_store(T):
        for h in range(2):
            A('v_mfma_f32_16x16x32_bf16 %s, %s, %s, 0' % (v(OMr(T, h), 4), v(VF(h) + 2 * T, 4), v(PF(T, h), 4)))
            A('v_mfma_f32_16x16x32_bf16 %s, %s, %s, 0' % (v(OLr(T, h), 4), v(VL + 2 * T, 4), v(PF(T, h), 4)))
        o = 240 + 6 * T
        cvt2(o, OMr(T, 0))
        cvt2(o + 2, OMr(T, 1))
        A('v_permlane16_swap_b32 v%d, v%d' % (o, o + 2))
        A('v_permlane16_swap_b32 v%d, v%d' % (o + 1, o + 3))
        A('buffer_store_dwordx4 %s, v32, %s, s%d offen offset:%d sc1' % (v(o, 4), WSR, S_LAY, 2048 * T))
        A('v_cvt_pk_bf16_f32 v%d, v%d, v%d' % (o + 4, OLr(T, 0), OLr(T, 0) + 1))
        A('v_cvt_pk_bf16_f32 v%d, v%d, v%d' % (o + 5, OLr(T, 1) + 2, OLr(T, 1) + 3))
        A('s_mov_b64 exec, s[%d:%d]' % (S_G0, S_G0 + 1))
        A('buffer_store_dwordx2 %s, v33, %s, s%d offen offset:%d sc1' % (v(o + 4, 2), WSR, S_LAY, 256 * T))
        A('s_mov_b64 exec, -1')
    A('s_waitcnt lgkmcnt(3)')
    A('v_mov_b32 v%d, v204' % (KF(0, 0) + 2))
    A('v_mov_b32 v%d, v205' % (KF(0, 1) + 2))
    for h in range(2):
        A('v_mfma_f32_16x16x32_bf16 %s, %s, %s, 0' % (v(SP(0, h), 4), v(KF(0, h), 4), v(QF(0, h), 4)))
    softmax2(1)
    pv_and_store(1)
    A('s_waitcnt lgkmcnt(0)')
    softmax2(0)
    pv_and_store(0)
    stamp(A, 'o_stored')
    A('s_waitcnt vmcnt(0)')
    A('s_add_u32 s8, s84, s%d' % S_LAY)
    A('s_add_u32 s8, s8, %d' % FO_)
    flag_store(A, 8)
    stamp(A, 'fo_pub')

    A('s_cmp_lg_u32 s%d, 0' % S_LAY)
    A('s_cbranch_scc1 L_conv_done')
    gen_conv(A)
    A.label('L_conv_done')
    A.pad(2)

    poll(A, 14, 's%d' % S_LAY, 64)
    stamp(A, 'fo_seen')
    for q in range(4):
        A('s_add_u32 s8, s%d, %d' % (S_LAY, q * 131072))
        for mt in range(2):
            A('buffer_load_dwordx4 %s, v25, %s, s8 offen offset:%d sc1' % (v(64 + 8 * q + 4 * mt, 4), WSR, 1024 * mt))
    A('buffer_load_dwordx2 v[96:97], v26, %s, s%d offen sc1' % (WSR, S_LAY))
    A('s_add_u32 s8, s%d, 16384' % S_LAY)
    A('buffer_load_dwordx2 v[98:99], v26, %s, s8 offen sc1' % WSR)
    A('s_lshl_b32 s8, s3, 12')
    A('s_add_u32 s8, s8, %d' % SC)
    A('v_add_u32 v100, s8, v27')
    A('s_mul_i32 s8, s6, 18432')
    A('s_lshl_b32 s9, s7, 10')
    A('s_add_u32 s9, s9, s8')
    A('s_add_u32 s9, s9, %d' % (SC + 16384))
    A('v_add_u32 v101, s9, v27')
    A('v_add_u32 v102, %d, v27' % SC)
    A('v_add_u32 v103, s8, v102')
    A('s_barrier')
    for q in range(4):
        for mt in range(2):
            A('s_waitcnt vmcnt(%d)' % (9 - 2 * q - mt))
            A('ds_write_b128 v100, %s offset:%d' % (v(64 + 8 * q + 4 * mt, 4), 18432 * mt + 1024 * q))
    A('s_waitcnt vmcnt(0)')
    A('ds_write_b128 v101, v[96:99]')
    A('s_waitcnt lgkmcnt(0)')
    A('s_barrier')
    AF = lambda ks: 104 + 12 * (ks % 4)
    PACC = 64

    def areads(ks):
        return ['ds_read_b128 %s, v102 offset:%d' % (v(AF(ks), 4), 1024 * ks),
                'ds_read_b128 %s, v102 offset:%d' % (v(AF(ks) + 4, 4), 18432 + 1024 * ks),
                'ds_read_b128 %s, v103 offset:%d' % (v(AF(ks) + 8, 4), 1024 * ks)]
    for ks in range(3):
        for r in areads(ks):
            A(r)
    for ks in range(18):
        rem = min(17, ks + 2) - ks
        A('s_waitcnt lgkmcnt(%d)' % (3 * rem))
        nxt = areads(ks + 3) if ks + 3 < 18 else []
        for j in range(2):
            for mt in range(2):
                d = v(PACC + 8 * mt + 4 * j, 4)
                A('v_mfma_f32_16x16x32_bf16 %s, %s, %s, %s' % (d, a(72 * j + 4 * ks, 4), v(AF(ks) + 4 * mt, 4), '0' if ks == 0 else d))
                if nxt:
                    A(nxt.pop(0))
        d = v(PACC + 16, 4)
        A('v_mfma_f32_16x16x32_bf16 %s, %s, %s, %s' % (d, a(144 + 4 * ks, 4), v(AF(ks) + 8, 4), '0' if ks == 0 else d))
    A('s_add_u32 s8, s%d, %d' % (S_LAY, 4 * 4608))
    for mt in range(2):
        d = PACC + 8 * mt
        for q in range(4):
            A('v_cvt_pk_bf16_f32 v%d, v%d, v%d' % (88 + 4 * mt + q, d + 2 * q, d + 2 * q + 1))
        A('buffer_store_dwordx4 %s, v28, %s, %s offen sc1' % (v(88 + 4 * mt, 4), WSR, 's%d' % S_LAY if mt == 0 else 's8'))
    cvt2(96, PACC + 16)
    A('s_cmp_ge_u32 s3, 2')
    A('s_cbranch_scc1 L_no9')
    A('buffer_store_dwordx2 v[96:97], v29, %s, s%d offen sc1' % (WSR, S_LAY))
    A.label('L_no9')
    stamp(A, 'a_stored')
    A('s_waitcnt vmcnt(0)')
    A('s_add_u32 s8, s84, s%d' % S_LAY)
    A('s_add_u32 s8, s8, %d' % FA_)
    flag_store(A, 8)
    stamp(A, 'fa_pub')

    YR = 53
    A('s_cmp_lg_u32 s%d, 0' % S_LAY)
    A('s_cbranch_scc1 L_y_done')
    A('v_lshlrev_b32 v64, 5, v1')
    A('s_mov_b32 s8, 0x%x' % FY_)
    poll(A, 64, 's8', 68, wide=True)
    stamp(A, 'fy_seen')
    A('v_lshlrev_b32 v64, 14, v0')
    A('v_cmp_gt_u32 vcc, 144, v0')
    A('v_mov_b32 v65, 0x%x' % OOB)
    A('v_cndmask_b32 v64, v65, v64, vcc')
    for k_ in range(4):
        A('s_add_u32 s8, s86, %d' % (4096 * k_))
        A('buffer_load_dwordx4 %s, v64, %s, s8 offen sc1' % (v(68 + 4 * k_, 4), WSR))
    A('v_lshlrev_b32 v65, 3, v0')
    A('v_add_u32 v65, %d, v65' % XT)
    A('s_barrier')
    A('s_waitcnt vmcnt(0)')
    for q in range(8):
        sel = S_PHI if q & 1 else S_PLO
        A('v_perm_b32 v%d, v%d, v%d, s%d' % (84 + 2 * q, 72 + (q >> 1), 68 + (q >> 1), sel))
        A('v_perm_b32 v%d, v%d, v%d, s%d' % (85 + 2 * q, 80 + (q >> 1), 76 + (q >> 1), sel))
    A('s_and_saveexec_b64 s[8:9], vcc')
    for q in range(8):
        A('ds_write_b64 v65, %s offset:%d' % (v(84 + 2 * q, 2), XTP * q))
    A('s_mov_b64 exec, s[8:9]')
    A('s_waitcnt lgkmcnt(0)')
    A('s_barrier')
    A('ds_read_b128 v[64:67], v21')
    A('ds_read_b128 v[68:71], v21 offset:512')
    A('ds_read_b32 v%d, v22' % (YR + 8))
    A('s_waitcnt lgkmcnt(0)')
    for j in range(8):
        A('v_mov_b32 v%d, v%d' % (YR + j, 64 + j))
    A('s_branch L_y_done2')
    A.label('L_y_done')
    A('s_barrier')
    A.label('L_y_done2')
    A.pad(2)
    poll(A, 15, 's%d' % S_LAY, 64)
    stamp(A, 'fa_seen')
    AR = 64
    A('buffer_load_dwordx4 %s, v18, %s, s%d offen sc1' % (v(AR, 4), WSR, S_LAY))
    A('buffer_load_dwordx4 %s, v19, %s, s%d offen sc1' % (v(AR + 4, 4), WSR, S_LAY))
    A('buffer_load_dword v%d, v20, %s, s%d offen sc1' % (AR + 8, WSR, S_LAY))
    X, Tm, YU = 80, 100, 120
    for j in range(9):
        unpack(A, X + 2 * j, XR + j)
    for j in range(9):
        unpack(A, YU + 2 * j, YR + j)
    A('s_waitcnt vmcnt(0)')
    for j in range(9):
        unpack(A, Tm + 2 * j, AR + j)
    for j in range(9):
        A(pk('add', X + 2 * j, X + 2 * j, Tm + 2 * j))
    for j in range(9):
        rnd_pair(A, X + 2 * j, AR + j)
    ln_stats(A, X, 140, 144)
    for j in range(9):
        A(pk('add', Tm + 2 * j, X + 2 * j, 140))
    for j in range(9):
        rnd_pair(A, Tm + 2 * j, AR + j)
    for j in range(9):
        A(pk('mul', Tm + 2 * j, Tm + 2 * j, 142))
    for j in range(9):
        rnd_pair(A, Tm + 2 * j, AR + j)
    for j in range(9):
        A(pk('mul', Tm + 2 * j, Tm + 2 * j, YU + 2 * j))
    for j in range(9):
        rnd_pair(A, Tm + 2 * j, AR + j)
    for j in range(9):
        A(pk('add', X + 2 * j, X + 2 * j, Tm + 2 * j))
    for j in range(9):
        A('v_cvt_pk_bf16_f32 v%d, v%d, v%d' % (XR + j, X + 2 * j, X + 2 * j + 1))
    A('s_cmp_lg_u32 s%d, 0' % S_LAY)
    A('s_cbranch_scc1 L_final')
    for j in range(9):
        unpack(A, X + 2 * j, XR + j)
    ln_stats(A, X, 140, 144)
    for j in range(9):
        A(pk('add', X + 2 * j, X + 2 * j, 140))
    for j in range(9):
        rnd_pair(A, X + 2 * j, AR + j)
    for j in range(9):
        A(pk('mul', X + 2 * j, X + 2 * j, 142))
    for j in range(9):
        A('v_cvt_pk_bf16_f32 v%d, v%d, v%d' % (AR + j, X + 2 * j, X + 2 * j + 1))
    A('s_mov_b32 s8, %d' % (XNF + LSTR))
    xt_publish(A, AR, None)
    stamp(A, 'xn2_stored')
    A('s_waitcnt vmcnt(0)')
    A('s_add_u32 s8, s84, %d' % (FX_ + LSTR))
    flag_store(A, 8)
    stamp(A, 'fx2_pub')
    A('s_mov_b32 s%d, 0x%x' % (S_LAY, LSTR))
    A.pad(4)
    A('s_branch L_layer')
    A.label('L_final')
    A('buffer_store_dwordx4 %s, v16, s[44:47], 0 offen' % v(XR, 4))
    A('buffer_store_dwordx4 %s, v16, s[44:47], 0 offen offset:512' % v(XR + 4, 4))
    A('buffer_store_dword v%d, v17, s[44:47], 0 offen' % (XR + 8))
    if STAMPS:
        stamp(A, 'end')
        A('s_lshl_b32 s8, s2, 2')
        A('s_add_u32 s8, s8, s3')
        A('s_lshl_b32 s8, s8, 8')
        A('s_add_u32 s8, s8, 0x%x' % STAMP)
        A('v_lshlrev_b32 v64, 2, v1')
        A('buffer_store_dword v255, v64, %s, s8 offen' % WSR)
    A('s_waitcnt vmcnt(0)')
    A.label('L_end')
    A('s_endpgm')
    A.raw('.section .rodata,"a"')
    A.raw('.p2align 6')
    A.raw('.amdhsa_kernel %s' % KNAME)
    A.raw('  .amdhsa_next_free_vgpr 512')
    A.raw('  .amdhsa_next_free_sgpr 102')
    A.raw('  .amdhsa_accum_offset 256')
    A.raw('  .amdhsa_group_segment_fixed_size 0')
    A.raw('  .amdhsa_kernarg_size 96')
    A.raw('  .amdhsa_user_sgpr_count 2')
    A.raw('  .amdhsa_user_sgpr_kernarg_segment_ptr 1')
    A.raw('  .amdhsa_system_sgpr_workgroup_id_x 1')
    A.raw('.end_amdhsa_kernel')


def gen_conv(A):
    EV, OD, UO = 0, 4160, 8320
    A('v_lshlrev_b32 v64, 4, v0')
    A('v_add_u32 v64, %d, v64' % SC)
    A('s_barrier')
    for c in range(3):
        A('ds_write_b128 v64, %s offset:%d' % (a(216 + 8 * c, 4), CH_SZ * c + EV + 32))
        A('ds_write_b128 v64, %s offset:%d' % (a(220 + 8 * c, 4), CH_SZ * c + OD + 32))
        A('ds_write_b128 v64, %s offset:%d' % (a(240 + 4 * c, 4), CH_SZ * c + UO))
    for r in range(68, 72):
        A('v_mov_b32 v%d, 0' % r)
    A('v_cmp_gt_u32 vcc, 30, v0')
    A('s_and_saveexec_b64 s[8:9], vcc')
    for c in range(3):
        A('ds_write_b128 v64, v[68:71] offset:%d' % (CH_SZ * c + UO + 4096))
    A('s_mov_b64 exec, s[8:9]')
    A('v_cmp_eq_u32 vcc, 0, v0')
    A('s_and_saveexec_b64 s[8:9], vcc')
    for c in range(3):
        A('ds_write_b128 v64, v[68:71] offset:%d' % (CH_SZ * c + EV))
        A('ds_write_b128 v64, v[68:71] offset:%d' % (CH_SZ * c + EV + 16))
        A('ds_write_b128 v64, v[68:71] offset:%d' % (CH_SZ * c + OD))
        A('v_accvgpr_read_b32 v75, a%d' % (216 + 8 * c))
        A('v_mov_b32 v72, 0')
        A('v_mov_b32 v73, 0')
        A('v_mov_b32 v74, 0')
        A('v_lshlrev_b32 v75, 16, v75')
        A('ds_write_b128 v64, v[72:75] offset:%d' % (CH_SZ * c + OD + 16))
    A('s_mov_b64 exec, s[8:9]')
    A('v_bfe_u32 v64, v3, 2, 1')
    A('v_lshlrev_b32 v64, 3, v64')
    A('v_and_b32 v65, 3, v3')
    A('v_lshl_add_u32 v64, v65, 1, v64')
    A('v_lshrrev_b32 v65, 3, v3')
    A('v_add_u32 v64, v64, v65')
    A('v_add_u32 v64, 1, v64')
    A('v_lshrrev_b32 v64, 1, v64')
    A('v_lshl_add_u32 v64, v4, 2, v64')
    A('v_lshlrev_b32 v64, 2, v64')
    A('v_cmp_eq_u32 vcc, 0, v65')
    A('v_mov_b32 v66, %d' % OD)
    A('v_cndmask_b32 v66, 0, v66, vcc')
    A('v_add_u32 v64, v64, v66')
    A('v_lshlrev_b32 v65, 5, v3')
    A('v_sub_u32 v65, %d, v65' % (UO + 480))
    A('v_lshl_add_u32 v65, v4, 4, v65')
    A('s_mul_i32 s8, s7, %d' % CH_SZ)
    A('s_lshl_b32 s9, s6, 6')
    A('s_add_u32 s8, s8, s9')
    A('s_add_u32 s8, s8, %d' % SC)
    FB = 68
    A('v_add_u32 v%d, s8, v64' % FB)
    for i in range(1, 4):
        A('v_add_u32 v%d, %d, v%d' % (FB + i, 1024 * i, FB))
    A('v_add_u32 v72, s8, v65')
    A('s_lshl_b32 s9, s3, 6')
    A('s_add_u32 s9, s9, %d' % (SC + 2 * CH_SZ))
    A('v_add_u32 v73, s9, v64')
    A('v_add_u32 v74, s9, v65')
    A('s_waitcnt lgkmcnt(0)')
    A('s_barrier')
    stamp(A, 'conv_staged')
    CACC = 80
    BUF = [120, 184]

    def reads(step):
        b = BUF[step & 1]
        L = []
        ro = 128 * step
        for sg in range(8):
            o = (512 * (sg & 1) + ro) // 4
            L.append('ds_read2_b32 %s, v%d offset0:%d offset1:%d' % (v(b + 4 * sg, 2), FB + (sg >> 1), o, o + 1))
            L.append('ds_read2_b32 %s, v%d offset0:%d offset1:%d' % (v(b + 4 * sg + 2, 2), FB + (sg >> 1), o + 2, o + 3))
            L.append('ds_read_b128 %s, v72 offset:%d' % (v(b + 32 + 4 * (7 - sg), 4), 512 * (7 - sg) + ro))
        return L
    for r in reads(0):
        A(r)
    for step in range(4):
        nxt = reads(step + 1) if step < 3 else []
        A('s_waitcnt lgkmcnt(0)')
        b = BUF[step & 1]
        k = 0
        for sg in range(8):
            for t in range(sg, 8):
                dl = sg - t + 7
                d = v(CACC + 4 * t, 4)
                c = '0' if (step == 0 and sg == 0) else d
                A('v_mfma_f32_16x16x32_bf16 %s, %s, %s, %s' % (d, v(b + 4 * sg, 4), v(b + 32 + 4 * dl, 4), c))
                if k < len(nxt):
                    A(nxt[k])
                    k += 1
    stamp(A, 'conv_own')
    A('s_and_b32 s8, s2, 3')
    for q4 in range(4):
        if q4 < 3:
            A('s_cmp_lg_u32 s8, %d' % q4)
            A('s_cbranch_scc1 L_sh%d' % (q4 + 1))
        tl, tb = q4, 7 - q4
        b = BUF[0]
        for rr in range(2):
            bb = BUF[rr]
            for sg in range(tb + 1):
                off = 512 * sg + 256 * rr
                A('v_add_u32 v75, %d, v73' % off)
                A('ds_read2_b32 %s, v75 offset0:0 offset1:1' % v(bb + 4 * sg, 2))
                A('ds_read2_b32 %s, v75 offset0:2 offset1:3' % v(bb + 4 * sg + 2, 2))
            for dl in range(7 - tb, 8):
                A('ds_read_b128 %s, v74 offset:%d' % (v(bb + 32 + 4 * dl, 4), 512 * dl + 256 * rr))
        for rr in range(2):
            bb = BUF[rr]
            if rr == 0:
                A('s_waitcnt lgkmcnt(%d)' % min(15, 3 * (tb + 1)))
            else:
                A('s_waitcnt lgkmcnt(0)')
            for sg in range(tb + 1):
                d = v(116, 4)
                A('v_mfma_f32_16x16x32_bf16 %s, %s, %s, %s' % (d, v(bb + 4 * sg, 4), v(bb + 32 + 4 * (sg - tb + 7), 4), '0' if (rr == 0 and sg == 0) else d))
                if sg <= tl:
                    d = v(112, 4)
                    A('v_mfma_f32_16x16x32_bf16 %s, %s, %s, %s' % (d, v(bb + 4 * sg, 4), v(bb + 32 + 4 * (sg - tl + 7), 4), '0' if (rr == 0 and sg == 0) else d))
        if q4 < 3:
            A.pad(8)
            A('s_branch L_sh_done')
            A.label('L_sh%d' % (q4 + 1))
    A.pad(8)
    A.label('L_sh_done')
    A('v_lshlrev_b32 v64, 4, v3')
    A('v_and_b32 v65, 1, v4')
    A('v_lshl_add_u32 v64, v65, 3, v64')
    A('v_lshlrev_b32 v66, 1, v64')
    A('s_mul_i32 s8, s7, %d' % CH_SZ)
    A('s_lshl_b32 s9, s6, 11')
    A('s_sub_u32 s8, s8, s9')
    A('s_add_u32 s8, s8, %d' % (SC + UO + 4080 - 1536))
    A('v_sub_u32 v67, s8, v66')
    UV = 120
    for k_ in range(4):
        A('ds_read_b128 %s, v67 offset:%d' % (v(UV + 4 * k_, 4), 512 * (3 - k_)))
    A('s_and_b32 s10, s2, 3')
    A('s_sub_u32 s11, 7, s10')
    A('s_cmp_eq_u32 s6, 0')
    A('s_cselect_b32 s10, s10, s11')
    A('s_lshl_b32 s11, s10, 9')
    A('s_sub_u32 s11, %d, s11' % (SC + 2 * CH_SZ + UO + 4080))
    A('v_sub_u32 v67, s11, v66')
    A('ds_read_b128 %s, v67' % v(UV + 16, 4))
    A('s_waitcnt lgkmcnt(0)')
    A('s_barrier')
    A('s_lshl_b32 s8, s3, 12')
    A('s_add_u32 s8, s8, %d' % SC)
    A('v_add_u32 v68, s8, v27')
    A('s_lshl_b32 s8, s3, 11')
    A('s_add_u32 s8, s8, %d' % (SC + 16384))
    A('v_add_u32 v69, s8, v27')
    A('s_cmp_eq_u32 s6, 0')
    A('s_cbranch_scc1 L_cv_e0')
    for k_ in range(4):
        A('ds_write_b128 v68, %s offset:%d' % (v(CACC + 4 * k_, 4), 1024 * k_))
    for k_ in range(16):
        A('v_mov_b32 v%d, v%d' % (CACC + k_, CACC + 16 + k_))
    A.pad(2)
    A('s_branch L_cv_e1')
    A.label('L_cv_e0')
    for k_ in range(4):
        A('ds_write_b128 v68, %s offset:%d' % (v(CACC + 16 + 4 * k_, 4), 1024 * k_))
    A.label('L_cv_e1')
    A('ds_write_b128 v69, v[112:115]')
    A('ds_write_b128 v69, v[116:119] offset:1024')
    A('s_xor_b32 s8, s3, 1')
    A('s_lshl_b32 s8, s8, 12')
    A('s_add_u32 s8, s8, %d' % SC)
    A('v_add_u32 v68, s8, v27')
    A('s_lshl_b32 s8, s6, 10')
    A('s_add_u32 s8, s8, %d' % (SC + 16384))
    A('v_add_u32 v69, s8, v27')
    A('s_waitcnt lgkmcnt(0)')
    A('s_barrier')
    PR = 144
    for k_ in range(4):
        A('ds_read_b128 %s, v68 offset:%d' % (v(PR + 4 * k_, 4), 1024 * k_))
    for w_ in range(4):
        A('ds_read_b128 %s, v69 offset:%d' % (v(PR + 16 + 4 * w_, 4), 2048 * w_))
    A('v_readlane_b32 s8, v62, s7')
    A('v_readlane_b32 s12, v62, 2')
    A('s_lshl_b32 s8, s8, 16')
    A('s_mov_b32 s9, s8')
    A('s_lshl_b32 s12, s12, 16')
    A('s_mov_b32 s13, s12')
    A('v_lshrrev_b32 v65, 1, v4')
    A('v_lshlrev_b32 v70, 4, v65')
    A('v_lshlrev_b32 v71, 5, v3')
    A('v_lshl_add_u32 v71, v65, 4, v71')
    A('v_and_b32 v65, 1, v4')
    A('v_lshl_add_u32 v71, v65, 3, v71')
    A('s_add_u32 s14, s87, s7')
    A('s_lshl_b32 s14, s14, 12')
    A('s_lshl_b32 s15, s6, 11')
    A('s_add_u32 s14, s14, s15')
    A('s_add_u32 s14, s14, 0x%x' % YT_)
    A('s_lshl_b32 s15, s88, 12')
    A('s_lshl_b32 s10, s10, 9')
    A('s_add_u32 s15, s15, s10')
    A('s_add_u32 s15, s15, 0x%x' % YT_)

    def fin(acc, uv, dpair, out):
        rnd_pair(A, acc, 176)
        rnd_pair(A, acc + 2, 177)
        for r in range(4):
            A('v_lshlrev_b32 v%d, v70, v%d' % (178 + r, uv + 3 - r))
        for r in range(4):
            A('v_and_b32 v%d, s%d, v%d' % (178 + r, S_HIM, 178 + r))
        A(pk('mul', 178, 178, dpair))
        A(pk('mul', 180, 180, dpair))
        rnd_pair(A, 178, 176)
        rnd_pair(A, 180, 177)
        A(pk('add', acc, acc, 178))
        A(pk('add', acc + 2, acc + 2, 180))
        A('v_cvt_pk_bf16_f32 v%d, v%d, v%d' % (out, acc, acc + 1))
        A('v_cvt_pk_bf16_f32 v%d, v%d, v%d' % (out + 1, acc + 2, acc + 3))
    for k_ in range(4):
        A('s_waitcnt lgkmcnt(%d)' % (7 - k_))
        acc = CACC + 4 * k_
        A(pk('add', acc, acc, PR + 4 * k_))
        A(pk('add', acc + 2, acc + 2, PR + 4 * k_ + 2))
        fin(acc, UV + 4 * k_, 's[8:9]', 184 + 2 * k_)
        A('buffer_store_dwordx2 %s, v71, %s, s14 offen offset:%d sc1' % (v(184 + 2 * k_, 2), WSR, 512 * k_))
    A('s_cmp_ge_u32 s3, 2')
    A('s_cbranch_scc1 L_cv_nosh')
    A('s_waitcnt lgkmcnt(0)')
    b = PR + 16
    for h in range(2):
        A(pk('add', b + 2 * h, b + 2 * h, b + 4 + 2 * h))
        A(pk('add', b + 8 + 2 * h, b + 8 + 2 * h, b + 12 + 2 * h))
        A(pk('add', b + 2 * h, b + 2 * h, b + 8 + 2 * h))
    fin(b, UV + 16, 's[12:13]', 192)
    A('buffer_store_dwordx2 v[192:193], v71, %s, s15 offen sc1' % WSR)
    A.label('L_cv_nosh')
    A('s_waitcnt vmcnt(0) lgkmcnt(0)')
    A('s_barrier')
    A('s_cmp_lg_u32 s3, 0')
    A('s_cbranch_scc1 L_cv_nofy')
    A('s_lshl_b32 s8, s2, 3')
    A('s_add_u32 s8, s8, 0x%x' % FY_)
    flag_store(A, 8)
    A.label('L_cv_nofy')
    stamp(A, 'fy_pub')


def main():
    global STAMPS
    out = 'cdna_kernels/%s.s' % NAME
    args = sys.argv[1:]
    if 'stamps' in args:
        STAMPS = True
        args.remove('stamps')
    if args:
        out = args[0]
    A = Asm()
    gen(A)
    hdr = open('cdna_kernels/%s.s.ref' % NAME).read().split('\n')
    hdr = [l for l in hdr if l.startswith(';') and '@launch' not in l]
    L = ['; @launch grid=(256,1,1) block=(256,1,1) lds=%d' % LDS_TOTAL]
    open(out, 'w').write('\n'.join(hdr + L) + '\n' + A.text())
    print('instructions:', A.nins)
    if STAMPS:
        open('stamp_names.txt', 'w').write('\n'.join(_stamp_names))


if __name__ == '__main__':
    main()
```
